```python
import torch

def _softmax(x, axis=-1):
    return torch.softmax(x, dim=axis)
def _gelu(x):
    return torch.nn.functional.gelu(x, approximate="tanh")
def _silu(x):
    return torch.nn.functional.silu(x)
def _sigmoid(x):
    return torch.sigmoid(x)
def _layernorm(x, axis=-1, eps=1e-5):
    m = x.mean(dim=axis, keepdim=True)
    v = x.var(dim=axis, keepdim=True, unbiased=False)
    return (x - m) / torch.sqrt(v + eps)
def _scatter_add(tgt, idx, src, axis=0):
    return tgt.clone().index_add_(axis, idx, src)
def _segment_sum(src, seg, n):
    out = torch.zeros((n,) + src.shape[1:], dtype=src.dtype)
    return out.index_add_(0, seg, src)
def _pad(x, pw):
    flat = tuple(v for pair in reversed(pw) for v in pair)
    return torch.nn.functional.pad(x, flat)

kernel_name = 'concat_heads__gqa_block_cached__sliding_block_cached__decode'

def setup_inputs():

    _w = (lambda a: (lambda t: t.to(torch.bfloat16) if t.is_floating_point() else t)(torch.as_tensor(a)))
    def _A_setup():
        B, Sq, D = 1, 1, 512
        Hq, Hkv, Sk, Dh = 32, 8, 32768, 128
        assert Hq % Hkv == 0, (Hq, Hkv)
        return {
            "x": _w((lambda *s: torch.randn(*s, dtype=torch.bfloat16) * 0.8)(B, Sq, D)),
            "k_cache": _w((lambda *s: torch.randn(*s, dtype=torch.bfloat16) * 1.6)(B, Hkv, Sk, Dh)),
            "v_cache": _w((lambda *s: torch.randn(*s, dtype=torch.bfloat16) * 0.2)(B, Hkv, Sk, Dh)),
            "wq": _w((lambda *s: torch.randn(*s, dtype=torch.bfloat16) * 1.6)(D, Hq * Dh) * (D ** -0.5)),
            "wo": _w((lambda *s: torch.randn(*s, dtype=torch.bfloat16) * 0.2)(Hq * Dh, D) * ((Hq * Dh) ** -0.5)),
        }
    _A_in = _A_setup()

    def _B_setup():
        B, Sq, D = 1, 1, 512
        Hq, Hkv, Sk, Dh = 32, 8, 32768, 128
        assert Hq % Hkv == 0, (Hq, Hkv)
        return {
            "x": _w((lambda *s: torch.randn(*s, dtype=torch.bfloat16) * 0.8)(B, Sq, D)),
            "k_cache": _w((lambda *s: torch.randn(*s, dtype=torch.bfloat16) * 1.6)(B, Hkv, Sk, Dh)),
            "v_cache": _w((lambda *s: torch.randn(*s, dtype=torch.bfloat16) * 0.2)(B, Hkv, Sk, Dh)),
            "wq": _w((lambda *s: torch.randn(*s, dtype=torch.bfloat16) * 1.6)(D, Hq * Dh) * (D ** -0.5)),
            "wo": _w((lambda *s: torch.randn(*s, dtype=torch.bfloat16) * 0.2)(Hq * Dh, D) * ((Hq * Dh) ** -0.5)),
        }
    _B_in = _B_setup()

    return {
        "A_x": _A_in["x"],
        "A_k_cache": _A_in["k_cache"],
        "A_v_cache": _A_in["v_cache"],
        "A_wq": _A_in["wq"],
        "A_wo": _A_in["wo"],
        "B_x": _B_in["x"],
        "B_k_cache": _B_in["k_cache"],
        "B_v_cache": _B_in["v_cache"],
        "B_wq": _B_in["wq"],
        "B_wo": _B_in["wo"],
    }

def reference(A_x, A_k_cache, A_v_cache, A_wq, A_wo, B_x, B_k_cache, B_v_cache, B_wq, B_wo):
    def _A_ref(x, k_cache, v_cache, wq, wo):
        B, Sq, D = x.shape
        Hq, Dh = 32, 128
        Hkv = k_cache.shape[1]
        rep = Hq // Hkv
        q = (lambda x, *d: x.permute(*d))((x @ wq).reshape(B, Sq, Hq, Dh), 0, 2, 1, 3)
        k = (lambda x, n, axis: torch.repeat_interleave(x, n, dim=axis))(k_cache, rep, axis=1)
        v = (lambda x, n, axis: torch.repeat_interleave(x, n, dim=axis))(v_cache, rep, axis=1)
        scores = torch.einsum("bhqd,bhkd->bhqk", q, k) * (Dh ** -0.5)
        p = _softmax(scores, axis=-1)
        o = torch.einsum("bhqk,bhkd->bhqd", p, v)
        return (lambda x, *d: x.permute(*d))(o, 0, 2, 1, 3).reshape(B, Sq, Hq * Dh) @ wo

    def _B_ref(x, k_cache, v_cache, wq, wo):
        B, Sq, D = x.shape
        Hq, Dh = 32, 128
        Hkv, Sk = k_cache.shape[1], k_cache.shape[2]
        W = min(4096, max(256, Sk // 4))
        rep = Hq // Hkv
        q = (lambda x, *d: x.permute(*d))((x @ wq).reshape(B, Sq, Hq, Dh), 0, 2, 1, 3)
        k = (lambda x, n, axis: torch.repeat_interleave(x, n, dim=axis))(k_cache[:, :, Sk - W:, :], rep, axis=1)
        v = (lambda x, n, axis: torch.repeat_interleave(x, n, dim=axis))(v_cache[:, :, Sk - W:, :], rep, axis=1)
        scores = torch.einsum("bhqd,bhkd->bhqk", q, k) * (Dh ** -0.5)
        p = _softmax(scores, axis=-1)
        o = torch.einsum("bhqk,bhkd->bhqd", p, v)
        return (lambda x, *d: x.permute(*d))(o, 0, 2, 1, 3).reshape(B, Sq, Hq * Dh) @ wo

    a = _A_ref(A_x, A_k_cache, A_v_cache, A_wq, A_wo)
    b = _B_ref(B_x, B_k_cache, B_v_cache, B_wq, B_wo)
    return torch.concatenate([a, b], axis=-1)
```

```python
import re

TRANS = ("v_exp_f32", "v_rcp_f32", "v_log_f32", "v_rsq_f32", "v_sqrt_f32", "v_sin_f32", "v_cos_f32")


def _regs(tok):
    tok = tok.strip()
    neg = tok.startswith("-")
    if neg:
        tok = tok[1:]
    m = re.fullmatch(r"abs\((.*)\)", tok)
    if m:
        tok = m.group(1)
    m = re.fullmatch(r"([vs])(\d+)", tok)
    if m:
        return [(m.group(1), int(m.group(2)))]
    m = re.fullmatch(r"([vs])\[(\d+):(\d+)\]", tok)
    if m:
        return [(m.group(1), i) for i in range(int(m.group(2)), int(m.group(3)) + 1)]
    if tok in ("vcc", "vcc_lo", "vcc_hi"):
        return [("x", "vcc")]
    if tok in ("exec", "exec_lo", "exec_hi"):
        return [("x", "exec")]
    if tok == "m0":
        return [("x", "m0")]
    return []


class Ins:
    def __init__(self, text):
        self.text = text
        t = text.split(";")[0].strip()
        self.is_label = t.endswith(":")
        self.kind = "other"
        self.w = set()
        self.r = set()
        self.dpp_r = set()
        self.srcc = set()
        self.dst_exact = None
        self.srcc_exact = None
        self.ab = set()
        self.wide_store = set()
        self.nop = 0
        self.lds_dma = False
        if self.is_label or not t or t.startswith("."):
            self.kind = "label" if self.is_label else "dir"
            return
        parts = t.split(None, 1)
        mn = parts[0]
        self.mn = mn
        rest = parts[1] if len(parts) > 1 else ""
        mods = ""
        m = re.search(r"\s(quad_perm:|row_|offen|idxen|offset:|offset0:|sc0|sc1|nt\b|lds\b|off\b\s|op_sel|neg_)", " " + rest)
        ops_s = rest
        ops_clean = re.sub(r"quad_perm:\[[^\]]*\]", "QP", rest)
        ops = [o.strip() for o in ops_clean.split(",")]
        toks = []
        for o in ops:
            sp = o.split()
            if sp:
                toks.append(sp[0])
                mods += " " + " ".join(sp[1:])
        self.mods = mods + (" QP" if "QP" in ops_clean else "")
        R = [_regs(x) for x in toks]
        if mn == "s_nop":
            self.kind = "nop"
            self.nop = int(toks[0], 0) + 1
            return
        if mn.startswith("v_mfma"):
            self.kind = "mfma"
            self.w = set(R[0])
            self.dst_exact = tuple(R[0])
            self.ab = set(R[1]) | set(R[2])
            self.srcc = set(R[3])
            self.srcc_exact = tuple(R[3])
            self.r = self.ab | self.srcc
            return
        if mn.startswith("v_"):
            self.kind = "trans" if any(mn.startswith(x) for x in TRANS) else "valu"
            if mn.startswith("v_cmp"):
                self.w = set(R[0])
                for x in R[1:]:
                    self.r |= set(x)
            elif mn.startswith("v_permlane"):
                self.w = set(R[0]) | set(R[1])
                self.r = set(R[0]) | set(R[1])
                self.kind = "permlane"
            elif mn.startswith("v_readfirstlane") or mn.startswith("v_readlane"):
                self.w = set(R[0])
                for x in R[1:]:
                    self.r |= set(x)
                self.kind = "readlane"
            else:
                self.w = set(R[0])
                for x in R[1:]:
                    self.r |= set(x)
                if mn.startswith("v_fmac") or mn.startswith("v_dot2c") or mn.startswith("v_pk_fmac"):
                    self.r |= set(R[0])
                if mn.startswith("v_add_co") or mn.startswith("v_addc_co") or mn.startswith("v_sub_co"):
                    self.w |= set(R[1])
                if "_dpp" in mn:
                    self.dpp_r = set(R[1])
            return
        if mn.startswith("buffer_") or mn.startswith("global_"):
            self.kind = "vmem"
            if mn in ("buffer_inv", "buffer_wbl2"):
                return
            if "load" in mn:
                if " lds" in (" " + self.mods + " ") or "lds" in self.mods.split():
                    self.lds_dma = True
                    for x in R:
                        self.r |= set(x)
                else:
                    self.w = set(R[0])
                    for x in R[1:]:
                        self.r |= set(x)
            elif "atomic" in mn:
                for x in R:
                    self.r |= set(x)
                if "sc0" in self.mods.split():
                    if mn.startswith("buffer_"):
                        self.w = set(R[0])
                    else:
                        self.w = set(R[0])
            else:
                for x in R:
                    self.r |= set(x)
                if "x4" in mn or "x3" in mn:
                    self.wide_store = set(R[0]) if mn.startswith("buffer_") else set(R[1])
            return
        if mn.startswith("ds_"):
            self.kind = "ds"
            if mn.startswith("ds_read") or "permute" in mn or "swizzle" in mn:
                self.w = set(R[0])
                for x in R[1:]:
                    self.r |= set(x)
            else:
                for x in R:
                    self.r |= set(x)
            return
        if mn.startswith("s_"):
            self.kind = "salu"
            if mn.startswith("s_cbranch") or mn.startswith("s_branch") or mn in (
                "s_waitcnt", "s_barrier", "s_endpgm", "s_sleep", "s_setprio"):
                self.kind = "ctl"
                return
            if mn.startswith("s_cmp"):
                for x in R:
                    self.r |= set(x)
                return
            if R:
                self.w = set(R[0])
            for x in R[1:]:
                self.r |= set(x)
            if "saveexec" in mn:
                self.w |= {("x", "exec")}
            return

    def is_valu(self):
        return self.kind in ("valu", "trans", "permlane", "readlane")


def need(p, c):
    n = 0
    pv = p.is_valu()
    if pv:
        pw_v = {x for x in p.w if x[0] == "v"}
        pw_s = {x for x in p.w if x[0] != "v"}
        if c.dpp_r & pw_v:
            n = max(n, 2)
        if c.kind == "vmem" and (c.r & pw_s):
            n = max(n, 5)
        if (c.is_valu() or c.kind == "mfma") and (c.r & pw_s):
            n = max(n, 2)
        if p.kind == "trans" and c.kind != "trans" and (c.is_valu() or c.kind == "mfma") and (c.r & pw_v):
            n = max(n, 1)
        if c.kind == "mfma" and (c.r & pw_v):
            n = max(n, 2)
        if c.kind == "readlane" and (c.r & pw_v):
            n = max(n, 1)
        if c.kind == "permlane" and (c.r & pw_v):
            n = max(n, 2)
        if c.kind == "salu" and (c.r & pw_s):
            n = max(n, 1)
    if p.kind == "mfma":
        passes = 4 if "16x16x32" in p.mn else 8
        big = 8 if passes == 4 else 12
        ovl = 6 if passes == 4 else 10
        war = 3 if passes == 4 else 7
        if c.kind == "mfma":
            if c.ab & p.w:
                n = max(n, big)
            if c.srcc & p.w:
                if c.srcc_exact == p.dst_exact:
                    pass
                else:
                    n = max(n, ovl)
            elif c.w & p.w:
                n = max(n, ovl)
        else:
            if (c.r | c.w) & p.w:
                n = max(n, big)
            if c.is_valu() and (c.w & p.srcc):
                n = max(n, war)
    if p.wide_store and (c.w & p.wide_store):
        n = max(n, 2)
    if p.kind == "salu" and ("x", "m0") in p.w and c.lds_dma:
        n = max(n, 1)
    return n


class Asm:
    def __init__(self):
        self.items = []

    def __call__(self, text):
        for line in text.strip("\n").split("\n"):
            if line.strip():
                self.items.append(line.strip())

    def label(self, name):
        self.items.append(name + ":")

    def raw(self, text):
        self.items.append(text)

    def finalize(self):
        out = []
        hist = []
        for t in self.items:
            ins = Ins(t)
            if ins.kind in ("dir", "other") and not ins.is_label:
                out.append(t)
                continue
            if ins.kind == "label":
                out.append(t)
                continue
            dist = 0
            pad = 0
            for p in reversed(hist):
                n = need(p, ins)
                if n > dist:
                    pad = max(pad, n - dist)
                dist += p.nop if p.kind == "nop" else 1
                if dist >= 24:
                    break
            while pad > 0:
                k = min(pad, 16)
                nop = Ins("s_nop %d" % (k - 1))
                out.append("    " + nop.text)
                hist.append(nop)
                pad -= k
            out.append("    " + t)
            hist.append(ins)
            if len(hist) > 64:
                hist = hist[-40:]
        return "\n".join(out) + "\n"
```

```python
import math
import struct
import sys

sys.path.insert(0, "gen")
from asmlib import Asm

NAME = "concat_heads__gqa_block_cached__sliding_block_cached__decode"
HEADER = open("cdna_kernels/%s.s.ref" % NAME).read().split("; Override launch")[0]

WS_Q = 0
WS_ML = 0x8000
WS_Y = 0x40000
WS_PO = 0x100000
WS_SIZE = 0x200000

C_SCALE = (128 ** -0.5) * math.log2(math.e)


def f2u(x):
    return struct.unpack("<I", struct.pack("<f", x))[0]


def srd(a, d, lo, hi, nbytes):
    a("s_mov_b32 s%d, s%d" % (d, lo))
    a("s_and_b32 s%d, s%d, 0xffff" % (d + 1, hi))
    a("s_mov_b32 s%d, 0x%x" % (d + 2, nbytes))
    a("s_mov_b32 s%d, 0x00020000" % (d + 3))


def srd_sel(a, d, loA, loB, nbytes):
    a("s_cselect_b32 s%d, s%d, s%d" % (d, loB, loA))
    a("s_cselect_b32 s%d, s%d, s%d" % (d + 1, loB + 1, loA + 1))
    a("s_and_b32 s%d, s%d, 0xffff" % (d + 1, d + 1))
    a("s_mov_b32 s%d, 0x%x" % (d + 2, nbytes))
    a("s_mov_b32 s%d, 0x00020000" % (d + 3))


def prologue(a, name, nwg):
    a.raw(".globl %s" % name)
    a.raw(".p2align 8")
    a.raw(".type %s,@function" % name)
    a.label(name)
    a("s_cmp_ge_u32 s2, %d" % nwg)
    a("s_cbranch_scc1 L_end_%s" % name)
    a("s_load_dwordx16 s[16:31], s[0:1], 0")
    a("s_load_dwordx8 s[32:39], s[0:1], 64")
    a("s_load_dwordx2 s[40:41], s[0:1], 96")
    a("s_and_b32 s3, s2, 7")
    a("s_lshr_b32 s4, s2, 3")


def epilogue(a, name):
    a.label("L_end_%s" % name)
    a("s_endpgm")


def descriptor(name, vgpr, sgpr=96):
    return """.amdhsa_kernel %s
  .amdhsa_next_free_vgpr %d
  .amdhsa_next_free_sgpr %d
  .amdhsa_accum_offset %d
  .amdhsa_group_segment_fixed_size 0
  .amdhsa_kernarg_size 104
  .amdhsa_user_sgpr_count 2
  .amdhsa_user_sgpr_kernarg_segment_ptr 1
  .amdhsa_system_sgpr_workgroup_id_x 1
.end_amdhsa_kernel
""" % (name, vgpr, sgpr, (vgpr + 3) // 4 * 4)


def k_qproj(a):
    name = "qproj_kernel"
    prologue(a, name, 256)
    a("s_lshr_b32 s5, s4, 4")
    a("s_and_b32 s6, s4, 15")
    a("s_lshl_b32 s7, s3, 10")
    a("s_lshl_b32 s8, s6, 6")
    a("s_add_u32 s7, s7, s8")
    a("v_lshrrev_b32 v1, 6, v0")
    a("v_lshlrev_b32 v1, 6, v1")
    a("v_bfe_u32 v2, v0, 2, 4")
    a("v_add_u32 v1, v1, v2")
    a("v_lshlrev_b32 v2, 13, v1")
    a("v_and_b32 v3, 3, v0")
    a("v_lshl_add_u32 v2, v3, 4, v2")
    a("v_lshlrev_b32 v1, 1, v1")
    a("s_waitcnt lgkmcnt(0)")
    a("s_cmp_eq_u32 s5, 1")
    srd_sel(a, 44, 22, 32, 0x400000)
    a("s_cmp_eq_u32 s5, 1")
    srd_sel(a, 48, 16, 26, 1024)
    srd(a, 52, 40, 41, WS_SIZE)
    for i in range(4):
        a("s_add_u32 s9, s7, %d" % (i * 131072))
        a("buffer_load_dwordx4 v[%d:%d], v2, s[44:47], s9 offen" % (8 + 4 * i, 11 + 4 * i))
    for i in range(4):
        a("buffer_load_ushort v%d, v1, s[48:51], 0 offen offset:%d" % (24 + i, 32 * i))
    a("s_waitcnt vmcnt(0)")
    for i in range(4):
        a("v_lshlrev_b32 v36, 16, v%d" % (24 + i))
        for r in range(4):
            a("v_lshlrev_b32 v37, 16, v%d" % (8 + 4 * i + r))
            a("v_and_b32 v38, 0xffff0000, v%d" % (8 + 4 * i + r))
            if i == 0:
                a("v_mul_f32 v%d, v36, v37" % (28 + 2 * r))
                a("v_mul_f32 v%d, v36, v38" % (29 + 2 * r))
            else:
                a("v_fmac_f32 v%d, v36, v37" % (28 + 2 * r))
                a("v_fmac_f32 v%d, v36, v38" % (29 + 2 * r))
    for rot in (4, 8):
        for j in range(8):
            a("v_add_f32_dpp v%d, v%d, v%d row_ror:%d row_mask:0xf bank_mask:0xf" % (28 + j, 28 + j, 28 + j, rot))
    a("v_lshrrev_b32 v4, 4, v0")
    a("v_lshlrev_b32 v4, 7, v4")
    a("v_lshl_add_u32 v4, v3, 5, v4")
    a("ds_write_b128 v4, v[28:31]")
    a("ds_write_b128 v4, v[32:35] offset:16")
    a("s_waitcnt lgkmcnt(0)")
    a("s_barrier")
    a("v_cmp_gt_u32 vcc, 16, v0")
    a("s_and_saveexec_b64 s[10:11], vcc")
    a("s_cbranch_execz L_end_%s" % name)
    a("v_lshlrev_b32 v5, 3, v0")
    for k in range(32):
        a("ds_read_b64 v[%d:%d], v5 offset:%d" % (40 + 2 * k, 41 + 2 * k, 128 * k))
    a("s_waitcnt lgkmcnt(0)")
    for k in range(1, 32):
        a("v_add_f32 v40, v40, v%d" % (40 + 2 * k))
        a("v_add_f32 v41, v41, v%d" % (41 + 2 * k))
    a("v_cvt_pk_bf16_f32 v40, v40, v41")
    a("v_lshlrev_b32 v5, 2, v0")
    a("s_lshl_b32 s9, s5, 13")
    a("s_add_u32 s9, s9, s7")
    a("buffer_store_dword v40, v5, s[52:55], s9 offen offset:%d" % WS_Q)
    epilogue(a, name)
    return name, 104


POOL0 = 88
NSLOT = 42


def k_attn(a):
    name = "attn_kernel"
    prologue(a, name, 256)
    VK, VV, MA, MB, X16, X32, LO, T0, T1 = 1, 2, 3, 4, 5, 6, 7, 8, 9
    QA, QB = 10, 14
    ZR = 18
    OL, OH = 28, 32
    M, MC, LS, T2 = 36, 37, 38, 39
    DB = 40
    SP = 56
    a("v_and_b32 v%d, 63, v0" % T0)
    a("v_lshrrev_b32 v%d, 6, v0" % T1)
    a("v_readfirstlane_b32 s5, v%d" % T1)
    a("v_lshlrev_b32 v%d, 4, v%d" % (VV, T0))
    a("v_bfe_u32 v%d, v%d, 2, 2" % (T1, T0))
    a("v_lshlrev_b32 v%d, 8, v%d" % (VK, T1))
    a("v_lshrrev_b32 v%d, 4, v%d" % (T2, T0))
    a("v_lshl_add_u32 v%d, v%d, 6, v%d" % (VK, T2, VK))
    a("v_and_b32 v%d, 3, v%d" % (M, T0))
    a("v_lshl_add_u32 v%d, v%d, 4, v%d" % (VK, M, VK))
    a("v_lshlrev_b32 v%d, 9, v%d" % (LO, T1))
    a("v_lshl_add_u32 v%d, v%d, 7, v%d" % (LO, T2, LO))
    a("v_lshl_add_u32 v%d, v%d, 2, v%d" % (LO, M, LO))
    a("s_lshl_b32 s6, s5, 11")
    a("v_add_u32 v%d, s6, v%d" % (LO, LO))
    a("v_mov_b32 v%d, 0" % MA)
    a("v_mov_b32 v%d, 0" % MB)
    a("v_mov_b32 v%d, 0xffff" % MC)
    a("v_mov_b32 v%d, 0xffff0000" % LS)
    a("v_cmp_eq_u32 vcc, 0, v%d" % M)
    a("v_cndmask_b32 v%d, v%d, v%d, vcc" % (MA, MA, MC))
    a("v_cmp_eq_u32 vcc, 1, v%d" % M)
    a("v_cndmask_b32 v%d, v%d, v%d, vcc" % (MA, MA, LS))
    a("v_cmp_eq_u32 vcc, 2, v%d" % M)
    a("v_cndmask_b32 v%d, v%d, v%d, vcc" % (MB, MB, MC))
    a("v_cmp_eq_u32 vcc, 3, v%d" % M)
    a("v_cndmask_b32 v%d, v%d, v%d, vcc" % (MB, MB, LS))
    a("v_xor_b32 v%d, 16, v%d" % (X16, T0))
    a("v_lshlrev_b32 v%d, 2, v%d" % (X16, X16))
    a("v_xor_b32 v%d, 32, v%d" % (X32, T0))
    a("v_lshlrev_b32 v%d, 2, v%d" % (X32, X32))
    for z in (0, 1, 4, 5, 8, 9):
        a("v_mov_b32 v%d, 0" % (ZR + z))
    a("s_lshl_b32 s6, s3, 23")
    a("s_lshl_b32 s7, s4, 18")
    a("s_lshl_b32 s8, s5, 15")
    a("s_add_u32 s7, s7, s8")
    a("s_add_u32 s12, s6, s7")
    a("s_lshl_b32 s7, s4, 15")
    a("s_lshl_b32 s8, s5, 12")
    a("s_add_u32 s7, s7, s8")
    a("s_add_u32 s13, s6, s7")
    a("s_add_u32 s13, s13, %d" % (28672 * 256))
    a("s_lshl_b32 s14, s3, 10")
    a("s_mov_b32 s15, 0x%x" % f2u(C_SCALE))
    a("s_waitcnt lgkmcnt(0)")
    srd(a, 44, 18, 19, 0x4000000)
    srd(a, 48, 20, 21, 0x4000000)
    srd(a, 52, 28, 29, 0x4000000)
    srd(a, 56, 30, 31, 0x4000000)
    srd(a, 60, 40, 41, WS_SIZE)
    a("buffer_load_dwordx4 v[%d:%d], v%d, s[60:63], s14 offen offset:%d" % (QA, QA + 3, VK, WS_Q))
    a("s_add_u32 s6, s14, 8192")
    a("buffer_load_dwordx4 v[%d:%d], v%d, s[60:63], s6 offen offset:%d" % (QB, QB + 3, VK, WS_Q))

    loads = []
    for kq in range(32):
        loads.append((44, 12, VK, kq))
    for kq in range(32):
        loads.append((48, 12, VV, kq))
    for kq in range(4):
        loads.append((52, 13, VK, kq))
    for kq in range(4):
        loads.append((56, 13, VV, kq))
    NL = len(loads)
    state = {"issued": 0}

    def slot(i):
        return POOL0 + 4 * (i % NSLOT)

    def issue():
        i = state["issued"]
        if i >= NL:
            return
        sr, sb, vo, kq = loads[i]
        if kq % 4 == 0 or True:
            a("s_add_u32 s6, s%d, %d" % (sb, (kq >> 2) * 4096))
        r = slot(i)
        a("buffer_load_dwordx4 v[%d:%d], v%d, s[%d:%d], s6 offen offset:%d" % (r, r + 3, vo, sr, sr + 3, (kq & 3) * 1024))
        state["issued"] += 1

    def wait_for(i):
        n = state["issued"] - (i + 1)
        a("s_waitcnt vmcnt(%d)" % n)

    for _ in range(NSLOT):
        issue()

    def reduce_diag(kq):
        d = DB + 4 * (kq % 4)
        s = SP + kq
        a("v_mov_b32_dpp v%d, v%d quad_perm:[0,0,0,0] row_mask:0xf bank_mask:0xf" % (s, d))
        for i in (1, 2, 3):
            a("v_add_f32_dpp v%d, v%d, v%d quad_perm:[%d,%d,%d,%d] row_mask:0xf bank_mask:0xf" % (s, d + i, s, i, i, i, i))

    def branch(beta, li0, nkq, q):
        for kq in range(nkq):
            li = li0 + kq
            wait_for(li)
            d = DB + 4 * (kq % 4)
            r = slot(li)
            a("v_mfma_f32_16x16x32_bf16 v[%d:%d], v[%d:%d], v[%d:%d], 0" % (d, d + 3, r, r + 3, q, q + 3))
            issue()
            if kq >= 2:
                reduce_diag(kq - 2)
        reduce_diag(nkq - 2)
        reduce_diag(nkq - 1)
        a("v_max_f32 v%d, v%d, v%d" % (M, SP, SP + 1))
        for k in range(2, nkq, 2):
            a("v_max3_f32 v%d, v%d, v%d, v%d" % (M, M, SP + k, SP + k + 1))
        a("ds_bpermute_b32 v%d, v%d, v%d" % (T0, X16, M))
        a("s_waitcnt lgkmcnt(0)")
        a("v_max_f32 v%d, v%d, v%d" % (M, M, T0))
        a("ds_bpermute_b32 v%d, v%d, v%d" % (T0, X32, M))
        a("s_waitcnt lgkmcnt(0)")
        a("v_max_f32 v%d, v%d, v%d" % (M, M, T0))
        a("v_mul_f32 v%d, s15, v%d" % (MC, M))
        for k in range(nkq):
            a("v_fma_f32 v%d, v%d, s15, -v%d" % (SP + k, SP + k, MC))
        for k in range(nkq):
            a("v_exp_f32 v%d, v%d" % (SP + k, SP + k))
        a("v_add_f32 v%d, v%d, v%d" % (LS, SP, SP + 1))
        for k in range(2, nkq):
            a("v_add_f32 v%d, v%d, v%d" % (LS, LS, SP + k))

        def prep(kq):
            rr = ZR + 2 + 4 * (kq & 1)
            a("v_cvt_pk_bf16_f32 v%d, v%d, v%d" % (T1, SP + kq, SP + kq))
            a("v_and_b32 v%d, v%d, v%d" % (rr, T1, MA))
            a("v_and_b32 v%d, v%d, v%d" % (rr + 1, T1, MB))

        prep(0)
        for kq in range(nkq):
            li = li0 + nkq + kq
            if kq + 1 < nkq:
                prep(kq + 1)
            wait_for(li)
            r = slot(li)
            rr = ZR + 2 + 4 * (kq & 1)
            cl = "0" if kq == 0 else "v[%d:%d]" % (OL, OL + 3)
            ch = "0" if kq == 0 else "v[%d:%d]" % (OH, OH + 3)
            a("v_mfma_f32_16x16x32_bf16 v[%d:%d], v[%d:%d], v[%d:%d], %s" % (OL, OL + 3, r, r + 3, rr, rr + 3, cl))
            a("v_mfma_f32_16x16x32_bf16 v[%d:%d], v[%d:%d], v[%d:%d], %s" % (OH, OH + 3, r, r + 3, rr - 2, rr + 1, ch))
            issue()
        a("ds_bpermute_b32 v%d, v%d, v%d" % (T0, X16, LS))
        a("s_waitcnt lgkmcnt(0)")
        a("v_add_f32 v%d, v%d, v%d" % (LS, LS, T0))
        a("ds_bpermute_b32 v%d, v%d, v%d" % (T0, X32, LS))
        a("s_waitcnt lgkmcnt(0)")
        a("v_add_f32 v%d, v%d, v%d" % (MC, LS, T0))
        for i in range(4):
            a("ds_write_b32 v%d, v%d offset:%d" % (LO, OL + i, beta * 16384 + 32 * i))
            a("ds_write_b32 v%d, v%d offset:%d" % (LO, OH + i, beta * 16384 + 32 * i + 16))
        a("v_lshrrev_b32 v%d, 9, v%d" % (T0, LO))
        a("v_lshlrev_b32 v%d, 3, v%d" % (T0, T0))
        a("ds_write_b64 v%d, v[%d:%d] offset:%d" % (T0, M, MC, 32768 + beta * 256))

    branch(0, 0, 32, QA)
    branch(1, 64, 4, QB)
    a("s_waitcnt lgkmcnt(0)")
    a("s_barrier")
    a("v_and_b32 v%d, 63, v0" % T0)
    a("s_lshr_b32 s6, s5, 2")
    a("s_and_b32 s7, s5, 3")
    a("s_lshl_b32 s8, s6, 14")
    a("s_lshl_b32 s9, s7, 9")
    a("s_add_u32 s8, s8, s9")
    a("v_lshlrev_b32 v%d, 3, v%d" % (T1, T0))
    a("v_add_u32 v%d, s8, v%d" % (T2, T1))
    a("s_lshl_b32 s8, s6, 8")
    a("s_lshl_b32 s9, s7, 3")
    a("s_add_u32 s8, s8, s9")
    a("v_mov_b32 v%d, s8" % T0)
    OB = 88
    MLB = 104
    for ws in range(8):
        a("ds_read_b64 v[%d:%d], v%d offset:%d" % (MLB + 2 * ws, MLB + 2 * ws + 1, T0, 32768 + ws * 32))
    for ws in range(8):
        a("ds_read_b64 v[%d:%d], v%d offset:%d" % (OB + 2 * ws, OB + 2 * ws + 1, T2, ws * 2048))
    a("s_waitcnt lgkmcnt(0)")
    a("v_max_f32 v%d, v%d, v%d" % (M, MLB, MLB + 2))
    for ws in range(2, 8, 2):
        a("v_max3_f32 v%d, v%d, v%d, v%d" % (M, M, MLB + 2 * ws, MLB + 2 * ws + 2))
    a("v_mul_f32 v%d, s15, v%d" % (MC, M))
    for ws in range(8):
        a("v_fma_f32 v%d, v%d, s15, -v%d" % (MLB + 2 * ws, MLB + 2 * ws, MC))
    for ws in range(8):
        a("v_exp_f32 v%d, v%d" % (MLB + 2 * ws, MLB + 2 * ws))
    a("v_mul_f32 v%d, v%d, v%d" % (MC, MLB, MLB + 1))
    a("v_mul_f32 v%d, v%d, v%d" % (OL, MLB, OB))
    a("v_mul_f32 v%d, v%d, v%d" % (OL + 1, MLB, OB + 1))
    for ws in range(1, 8):
        a("v_fmac_f32 v%d, v%d, v%d" % (MC, MLB + 2 * ws, MLB + 2 * ws + 1))
        a("v_fmac_f32 v%d, v%d, v%d" % (OL, MLB + 2 * ws, OB + 2 * ws))
        a("v_fmac_f32 v%d, v%d, v%d" % (OL + 1, MLB + 2 * ws, OB + 2 * ws + 1))
    a("s_lshl_b32 s8, s6, 5")
    a("s_lshl_b32 s9, s3, 2")
    a("s_add_u32 s8, s8, s9")
    a("s_add_u32 s8, s8, s7")
    a("s_lshl_b32 s8, s8, 5")
    a("s_add_u32 s8, s8, s4")
    a("s_lshl_b32 s9, s8, 9")
    a("s_add_u32 s9, s9, 0x%x" % WS_PO)
    a("buffer_store_dwordx2 v[%d:%d], v%d, s[60:63], s9 offen" % (OL, OL + 1, T1))
    a("s_lshl_b32 s9, s8, 3")
    a("s_add_u32 s9, s9, 0x%x" % WS_ML)
    a("v_mov_b32 v%d, 0" % T0)
    a("s_mov_b64 exec, 1")
    a("buffer_store_dwordx2 v[%d:%d], v%d, s[60:63], s9 offen" % (M, MC, T0))
    epilogue(a, name)
    return name, 256


def k_comb(a):
    name = "comb_kernel"
    prologue(a, name, 256)
    a("s_lshr_b32 s5, s4, 4")
    a("s_bfe_u32 s6, s4, 0x20002")
    a("s_and_b32 s7, s4, 3")
    a("s_lshl_b32 s8, s3, 2")
    a("s_add_u32 s8, s8, s6")
    a("s_mov_b32 s15, 0x%x" % f2u(C_SCALE))
    a("v_lshrrev_b32 v1, 4, v0")
    a("v_and_b32 v2, 15, v0")
    a("v_lshlrev_b32 v3, 12, v1")
    a("v_lshl_add_u32 v3, v2, 4, v3")
    a("s_lshl_b32 s9, s8, 17")
    a("s_lshl_b32 s10, s7, 8")
    a("s_add_u32 s9, s9, s10")
    a("s_lshl_b32 s11, s5, 5")
    a("s_add_u32 s11, s11, s8")
    a("v_and_b32 v4, 31, v0")
    a("v_lshlrev_b32 v5, 3, v4")
    a("s_lshl_b32 s12, s11, 8")
    a("s_add_u32 s12, s12, 0x%x" % WS_ML)
    a("v_lshrrev_b32 v6, 5, v0")
    a("v_lshlrev_b32 v7, 10, v6")
    a("v_lshl_add_u32 v7, v4, 4, v7")
    a("s_lshl_b32 s13, s11, 14")
    a("s_add_u32 s13, s13, 0x%x" % WS_PO)
    a("s_waitcnt lgkmcnt(0)")
    a("s_cmp_eq_u32 s5, 1")
    srd_sel(a, 44, 24, 34, 0x400000)
    srd(a, 48, 40, 41, WS_SIZE)
    a("buffer_load_dwordx2 v[8:9], v5, s[48:51], s12 offen")
    a("buffer_load_dwordx4 v[12:15], v7, s[48:51], s13 offen")
    a("buffer_load_dwordx4 v[16:19], v7, s[48:51], s13 offen offset:512")
    for i in range(4):
        a("buffer_load_dwordx4 v[%d:%d], v3, s[44:47], s9 offen offset:%d" % (20 + 4 * i, 23 + 4 * i, 1024 * i))
    a("v_and_b32 v10, 63, v0")
    a("v_xor_b32 v10, 16, v10")
    a("v_lshlrev_b32 v10, 2, v10")
    a("s_waitcnt vmcnt(6)")
    a("v_mov_b32 v36, v8")
    for rot in (1, 2, 4, 8):
        a("v_max_f32_dpp v36, v36, v36 row_ror:%d row_mask:0xf bank_mask:0xf" % rot)
    a("ds_bpermute_b32 v37, v10, v36")
    a("s_waitcnt lgkmcnt(0)")
    a("v_max_f32 v36, v36, v37")
    a("v_mul_f32 v36, s15, v36")
    a("v_fma_f32 v38, v8, s15, -v36")
    a("v_exp_f32 v38, v38")
    a("v_mul_f32 v39, v38, v9")
    for rot in (1, 2, 4, 8):
        a("v_add_f32_dpp v39, v39, v39 row_ror:%d row_mask:0xf bank_mask:0xf" % rot)
    a("ds_bpermute_b32 v37, v10, v39")
    a("v_lshlrev_b32 v11, 3, v6")
    a("v_add_u32 v40, 4, v11")
    a("ds_bpermute_b32 v41, v11, v38")
    a("ds_bpermute_b32 v42, v40, v38")
    a("s_waitcnt lgkmcnt(0)")
    a("v_add_f32 v39, v39, v37")
    a("v_rcp_f32 v39, v39")
    a("s_waitcnt vmcnt(4)")
    for k in range(4):
        a("v_mul_f32 v%d, v41, v%d" % (12 + k, 12 + k))
        a("v_fmac_f32 v%d, v42, v%d" % (12 + k, 16 + k))
    a("v_lshlrev_b32 v11, 9, v6")
    a("v_lshl_add_u32 v11, v4, 4, v11")
    a("ds_write_b128 v11, v[12:15]")
    a("s_waitcnt lgkmcnt(0)")
    a("s_barrier")
    a("v_and_b32 v11, 127, v0")
    a("v_lshlrev_b32 v11, 2, v11")
    for k in range(16):
        a("ds_read_b32 v%d, v11 offset:%d" % (44 + k, 512 * k))
    a("s_waitcnt lgkmcnt(0)")
    for k in range(1, 16):
        a("v_add_f32 v44, v44, v%d" % (44 + k))
    a("v_mul_f32 v44, v44, v39")
    a("v_cvt_pk_bf16_f32 v44, v44, v44")
    a("v_lshlrev_b32 v44, 16, v44")
    a("ds_write_b32 v11, v44 offset:8192")
    a("s_waitcnt lgkmcnt(0)")
    a("s_barrier")
    a("v_lshlrev_b32 v12, 4, v1")
    a("ds_read_b128 v[44:47], v12 offset:8192")
    a("s_waitcnt vmcnt(0) lgkmcnt(0)")
    for i in range(4):
        for r in range(4):
            a("v_lshlrev_b32 v37, 16, v%d" % (20 + 4 * i + r))
            a("v_and_b32 v38, 0xffff0000, v%d" % (20 + 4 * i + r))
            if i == 0:
                a("v_mul_f32 v%d, v44, v37" % (48 + 2 * r))
                a("v_mul_f32 v%d, v44, v38" % (49 + 2 * r))
            else:
                a("v_fmac_f32 v%d, v%d, v37" % (48 + 2 * r, 44 + i))
                a("v_fmac_f32 v%d, v%d, v38" % (49 + 2 * r, 44 + i))
    a("v_lshlrev_b32 v12, 9, v1")
    a("v_lshl_add_u32 v12, v2, 5, v12")
    a("ds_write_b128 v12, v[48:51] offset:16384")
    a("ds_write_b128 v12, v[52:55] offset:16400")
    a("s_waitcnt lgkmcnt(0)")
    a("s_barrier")
    a("v_cmp_gt_u32 vcc, 128, v0")
    a("s_and_saveexec_b64 s[10:11], vcc")
    a("s_cbranch_execz L_end_%s" % name)
    for k in range(32):
        a("ds_read_b32 v%d, v11 offset:%d" % (56 + k, 16384 + 512 * k))
    a("s_waitcnt lgkmcnt(0)")
    for k in range(1, 32):
        a("v_add_f32 v56, v56, v%d" % (56 + k))
    a("s_lshl_b32 s9, s5, 2")
    a("s_add_u32 s9, s9, s7")
    a("s_lshl_b32 s9, s9, 5")
    a("s_add_u32 s9, s9, s8")
    a("s_lshl_b32 s9, s9, 9")
    a("s_add_u32 s9, s9, 0x%x" % WS_Y)
    a("buffer_store_dword v56, v11, s[48:51], s9 offen")
    epilogue(a, name)
    return name, 96


def k_final(a):
    name = "final_kernel"
    prologue(a, name, 8)
    a("v_and_b32 v1, 127, v0")
    a("v_lshlrev_b32 v1, 2, v1")
    a("v_lshrrev_b32 v2, 7, v0")
    a("v_lshl_add_u32 v3, v2, 12, v1")
    a("s_lshl_b32 s9, s2, 14")
    a("s_add_u32 s9, s9, 0x%x" % WS_Y)
    a("s_waitcnt lgkmcnt(0)")
    srd(a, 48, 40, 41, WS_SIZE)
    srd(a, 52, 36, 37, 2048)
    for k in range(8):
        a("buffer_load_dword v%d, v3, s[48:51], s9 offen offset:%d" % (8 + k, 512 * k))
    a("s_waitcnt vmcnt(0)")
    for k in range(1, 8):
        a("v_add_f32 v8, v8, v%d" % (8 + k))
    a("v_lshl_add_u32 v4, v2, 9, v1")
    a("ds_write_b32 v4, v8")
    a("s_waitcnt lgkmcnt(0)")
    a("s_barrier")
    a("v_cmp_gt_u32 vcc, 128, v0")
    a("s_and_saveexec_b64 s[10:11], vcc")
    a("s_cbranch_execz L_end_%s" % name)
    for k in range(4):
        a("ds_read_b32 v%d, v1 offset:%d" % (8 + k, 512 * k))
    a("s_waitcnt lgkmcnt(0)")
    for k in range(1, 4):
        a("v_add_f32 v8, v8, v%d" % (8 + k))
    a("v_cvt_pk_bf16_f32 v8, v8, v8")
    a("v_lshrrev_b32 v1, 1, v1")
    a("s_lshl_b32 s9, s2, 8")
    a("buffer_store_short v8, v1, s[52:55], s9 offen")
    epilogue(a, name)
    return name, 24


def main():
    a = Asm()
    ks = []
    a.raw('.amdgcn_target "amdgcn-amd-amdhsa--gfx950"')
    a.raw(".text")
    ks.append(k_qproj(a))
    ks.append(k_attn(a))
    ks.append(k_comb(a))
    ks.append(k_final(a))
    body = a.finalize()
    launch = (
        "; @launch kernel=qproj_kernel grid=(256,1,1) block=(512,1,1) lds=4096\n"
        "; @launch kernel=attn_kernel grid=(256,1,1) block=(512,1,1) lds=33280\n"
        "; @launch kernel=comb_kernel grid=(256,1,1) block=(512,1,1) lds=32768\n"
        "; @launch kernel=final_kernel grid=(8,1,1) block=(512,1,1) lds=2048\n"
    )
    out = HEADER + launch + body + '.section .rodata,"a"\n'
    for n, v in ks:
        out += ".p2align 6\n" + descriptor(n, v)
    path = sys.argv[1] if len(sys.argv) > 1 else "cdna_kernels/%s.s" % NAME
    open(path, "w").write(out)


if __name__ == "__main__":
    main()
```

```python
import math
import struct
import sys

sys.path.insert(0, "gen")
from asmlib import Asm

NAME = "concat_heads__gqa_block_cached__sliding_block_cached__decode"
HEADER = open("cdna_kernels/%s.s.ref" % NAME).read().split("; Override launch")[0]

WS_Q = 0
WS_ML = 0x8000
WS_Y = 0x40000
WS_PO = 0x100000
WS_SIZE = 0x200000

C_SCALE = (128 ** -0.5) * math.log2(math.e)


def f2u(x):
    return struct.unpack("<I", struct.pack("<f", x))[0]


def srd(a, d, lo, hi, nbytes):
    a("s_mov_b32 s%d, s%d" % (d, lo))
    a("s_and_b32 s%d, s%d, 0xffff" % (d + 1, hi))
    a("s_mov_b32 s%d, 0x%x" % (d + 2, nbytes))
    a("s_mov_b32 s%d, 0x00020000" % (d + 3))


def srd_sel(a, d, loA, loB, nbytes):
    a("s_cselect_b32 s%d, s%d, s%d" % (d, loB, loA))
    a("s_cselect_b32 s%d, s%d, s%d" % (d + 1, loB + 1, loA + 1))
    a("s_and_b32 s%d, s%d, 0xffff" % (d + 1, d + 1))
    a("s_mov_b32 s%d, 0x%x" % (d + 2, nbytes))
    a("s_mov_b32 s%d, 0x00020000" % (d + 3))


def prologue(a, name, nwg):
    a.raw(".globl %s" % name)
    a.raw(".p2align 8")
    a.raw(".type %s,@function" % name)
    a.label(name)
    a("s_cmp_ge_u32 s2, %d" % nwg)
    a("s_cbranch_scc1 L_end_%s" % name)
    a("s_load_dwordx16 s[16:31], s[0:1], 0")
    a("s_load_dwordx8 s[32:39], s[0:1], 64")
    a("s_load_dwordx2 s[40:41], s[0:1], 96")
    a("s_and_b32 s3, s2, 7")
    a("s_lshr_b32 s4, s2, 3")


def epilogue(a, name):
    a.label("L_end_%s" % name)
    a("s_endpgm")


def descriptor(name, vgpr, sgpr=96):
    return """.amdhsa_kernel %s
  .amdhsa_next_free_vgpr %d
  .amdhsa_next_free_sgpr %d
  .amdhsa_accum_offset %d
  .amdhsa_group_segment_fixed_size 0
  .amdhsa_kernarg_size 104
  .amdhsa_user_sgpr_count 2
  .amdhsa_user_sgpr_kernarg_segment_ptr 1
  .amdhsa_system_sgpr_workgroup_id_x 1
.end_amdhsa_kernel
""" % (name, vgpr, sgpr, (vgpr + 3) // 4 * 4)


def k_qproj(a):
    name = "qproj_kernel"
    prologue(a, name, 256)
    a("s_lshr_b32 s5, s4, 4")
    a("s_and_b32 s6, s4, 15")
    a("s_lshl_b32 s7, s3, 10")
    a("s_lshl_b32 s8, s6, 6")
    a("s_add_u32 s7, s7, s8")
    a("v_lshrrev_b32 v1, 6, v0")
    a("v_lshlrev_b32 v1, 6, v1")
    a("v_bfe_u32 v2, v0, 2, 4")
    a("v_add_u32 v1, v1, v2")
    a("v_lshlrev_b32 v2, 13, v1")
    a("v_and_b32 v3, 3, v0")
    a("v_lshl_add_u32 v2, v3, 4, v2")
    a("v_lshlrev_b32 v1, 1, v1")
    a("s_waitcnt lgkmcnt(0)")
    a("s_cmp_eq_u32 s5, 1")
    srd_sel(a, 44, 22, 32, 0x400000)
    a("s_cmp_eq_u32 s5, 1")
    srd_sel(a, 48, 16, 26, 1024)
    srd(a, 52, 40, 41, WS_SIZE)
    for i in range(4):
        a("s_add_u32 s9, s7, %d" % (i * 131072))
        a("buffer_load_dwordx4 v[%d:%d], v2, s[44:47], s9 offen" % (8 + 4 * i, 11 + 4 * i))
    for i in range(4):
        a("buffer_load_ushort v%d, v1, s[48:51], 0 offen offset:%d" % (24 + i, 32 * i))
    a("s_waitcnt vmcnt(0)")
    for i in range(4):
        a("v_lshlrev_b32 v36, 16, v%d" % (24 + i))
        for r in range(4):
            a("v_lshlrev_b32 v37, 16, v%d" % (8 + 4 * i + r))
            a("v_and_b32 v38, 0xffff0000, v%d" % (8 + 4 * i + r))
            if i == 0:
                a("v_mul_f32 v%d, v36, v37" % (28 + 2 * r))
                a("v_mul_f32 v%d, v36, v38" % (29 + 2 * r))
            else:
                a("v_fmac_f32 v%d, v36, v37" % (28 + 2 * r))
                a("v_fmac_f32 v%d, v36, v38" % (29 + 2 * r))
    for rot in (4, 8):
        for j in range(8):
            a("v_add_f32_dpp v%d, v%d, v%d row_ror:%d row_mask:0xf bank_mask:0xf" % (28 + j, 28 + j, 28 + j, rot))
    a("v_lshrrev_b32 v4, 4, v0")
    a("v_lshlrev_b32 v4, 7, v4")
    a("v_lshl_add_u32 v4, v3, 5, v4")
    a("ds_write_b128 v4, v[28:31]")
    a("ds_write_b128 v4, v[32:35] offset:16")
    a("s_waitcnt lgkmcnt(0)")
    a("s_barrier")
    a("v_cmp_gt_u32 vcc, 16, v0")
    a("s_and_saveexec_b64 s[10:11], vcc")
    a("s_cbranch_execz L_end_%s" % name)
    a("v_lshlrev_b32 v5, 3, v0")
    for k in range(32):
        a("ds_read_b64 v[%d:%d], v5 offset:%d" % (40 + 2 * k, 41 + 2 * k, 128 * k))
    a("s_waitcnt lgkmcnt(0)")
    for k in range(1, 32):
        a("v_add_f32 v40, v40, v%d" % (40 + 2 * k))
        a("v_add_f32 v41, v41, v%d" % (41 + 2 * k))
    a("v_cvt_pk_bf16_f32 v40, v40, v41")
    a("v_lshlrev_b32 v5, 2, v0")
    a("s_lshl_b32 s9, s5, 13")
    a("s_add_u32 s9, s9, s7")
    a("buffer_store_dword v40, v5, s[52:55], s9 offen offset:%d" % WS_Q)
    epilogue(a, name)
    return name, 104


import os
POOL0 = 88
NSLOT = int(os.environ.get('NSLOT', '42'))
KLIN = int(os.environ.get('KLIN', '0'))
NT = os.environ.get('NT', '')


def k_attn(a):
    name = "attn_kernel"
    prologue(a, name, 256)
    VK, VV, MA, MB, X16, X32, LO, T0, T1 = 1, 2, 3, 4, 5, 6, 7, 8, 9
    QA, QB = 10, 14
    ZR = 18
    OL, OH = 28, 32
    M, MC, LS, T2 = 36, 37, 38, 39
    DB = 40
    SP = 56
    a("v_and_b32 v%d, 63, v0" % T0)
    a("v_lshrrev_b32 v%d, 6, v0" % T1)
    a("v_readfirstlane_b32 s5, v%d" % T1)
    a("v_lshlrev_b32 v%d, 4, v%d" % (VV, T0))
    a("v_bfe_u32 v%d, v%d, 2, 2" % (T1, T0))
    a("v_lshlrev_b32 v%d, 8, v%d" % (VK, T1))
    a("v_lshrrev_b32 v%d, 4, v%d" % (T2, T0))
    a("v_lshl_add_u32 v%d, v%d, 6, v%d" % (VK, T2, VK))
    a("v_and_b32 v%d, 3, v%d" % (M, T0))
    a("v_lshl_add_u32 v%d, v%d, 4, v%d" % (VK, M, VK))
    a("v_lshlrev_b32 v%d, 9, v%d" % (LO, T1))
    a("v_lshl_add_u32 v%d, v%d, 7, v%d" % (LO, T2, LO))
    a("v_lshl_add_u32 v%d, v%d, 2, v%d" % (LO, M, LO))
    a("s_lshl_b32 s6, s5, 11")
    a("v_add_u32 v%d, s6, v%d" % (LO, LO))
    a("v_mov_b32 v%d, 0" % MA)
    a("v_mov_b32 v%d, 0" % MB)
    a("v_mov_b32 v%d, 0xffff" % MC)
    a("v_mov_b32 v%d, 0xffff0000" % LS)
    a("v_cmp_eq_u32 vcc, 0, v%d" % M)
    a("v_cndmask_b32 v%d, v%d, v%d, vcc" % (MA, MA, MC))
    a("v_cmp_eq_u32 vcc, 1, v%d" % M)
    a("v_cndmask_b32 v%d, v%d, v%d, vcc" % (MA, MA, LS))
    a("v_cmp_eq_u32 vcc, 2, v%d" % M)
    a("v_cndmask_b32 v%d, v%d, v%d, vcc" % (MB, MB, MC))
    a("v_cmp_eq_u32 vcc, 3, v%d" % M)
    a("v_cndmask_b32 v%d, v%d, v%d, vcc" % (MB, MB, LS))
    a("v_xor_b32 v%d, 16, v%d" % (X16, T0))
    a("v_lshlrev_b32 v%d, 2, v%d" % (X16, X16))
    a("v_xor_b32 v%d, 32, v%d" % (X32, T0))
    a("v_lshlrev_b32 v%d, 2, v%d" % (X32, X32))
    for z in (0, 1, 4, 5, 8, 9):
        a("v_mov_b32 v%d, 0" % (ZR + z))
    a("s_lshl_b32 s6, s3, 23")
    a("s_lshl_b32 s7, s4, 18")
    a("s_lshl_b32 s8, s5, 15")
    a("s_add_u32 s7, s7, s8")
    a("s_add_u32 s12, s6, s7")
    a("s_lshl_b32 s7, s4, 15")
    a("s_lshl_b32 s8, s5, 12")
    a("s_add_u32 s7, s7, s8")
    a("s_add_u32 s13, s6, s7")
    a("s_add_u32 s13, s13, %d" % (28672 * 256))
    a("s_lshl_b32 s14, s3, 10")
    a("s_mov_b32 s15, 0x%x" % f2u(C_SCALE))
    a("s_waitcnt lgkmcnt(0)")
    srd(a, 44, 18, 19, 0x4000000)
    srd(a, 48, 20, 21, 0x4000000)
    srd(a, 52, 28, 29, 0x4000000)
    srd(a, 56, 30, 31, 0x4000000)
    srd(a, 60, 40, 41, WS_SIZE)
    a("buffer_load_dwordx4 v[%d:%d], v%d, s[60:63], s14 offen offset:%d" % (QA, QA + 3, VK, WS_Q))
    a("s_add_u32 s6, s14, 8192")
    a("buffer_load_dwordx4 v[%d:%d], v%d, s[60:63], s6 offen offset:%d" % (QB, QB + 3, VK, WS_Q))

    loads = []
    for kq in range(32):
        loads.append((44, 12, VK, kq))
    for kq in range(32):
        loads.append((48, 12, VV, kq))
    for kq in range(4):
        loads.append((52, 13, VK, kq))
    for kq in range(4):
        loads.append((56, 13, VV, kq))
    NL = len(loads)
    state = {"issued": 0}

    def slot(i):
        return POOL0 + 4 * (i % NSLOT)

    def issue():
        i = state["issued"]
        if i >= NL:
            return
        sr, sb, vo, kq = loads[i]
        if kq % 4 == 0 or True:
            a("s_add_u32 s6, s%d, %d" % (sb, (kq >> 2) * 4096))
        r = slot(i)
        if KLIN:
            vo = VV
        a("buffer_load_dwordx4 v[%d:%d], v%d, s[%d:%d], s6 offen offset:%d %s" % (r, r + 3, vo, sr, sr + 3, (kq & 3) * 1024, NT))
        state["issued"] += 1

    def wait_for(i):
        n = state["issued"] - (i + 1)
        a("s_waitcnt vmcnt(%d)" % n)

    for _ in range(NSLOT):
        issue()

    def reduce_diag(kq):
        d = DB + 4 * (kq % 4)
        s = SP + kq
        a("v_mov_b32_dpp v%d, v%d quad_perm:[0,0,0,0] row_mask:0xf bank_mask:0xf" % (s, d))
        for i in (1, 2, 3):
            a("v_add_f32_dpp v%d, v%d, v%d quad_perm:[%d,%d,%d,%d] row_mask:0xf bank_mask:0xf" % (s, d + i, s, i, i, i, i))

    def branch(beta, li0, nkq, q):
        for kq in range(nkq):
            li = li0 + kq
            wait_for(li)
            d = DB + 4 * (kq % 4)
            r = slot(li)
            a("v_mfma_f32_16x16x32_bf16 v[%d:%d], v[%d:%d], v[%d:%d], 0" % (d, d + 3, r, r + 3, q, q + 3))
            issue()
            if kq >= 2:
                reduce_diag(kq - 2)
        reduce_diag(nkq - 2)
        reduce_diag(nkq - 1)
        a("v_max_f32 v%d, v%d, v%d" % (M, SP, SP + 1))
        for k in range(2, nkq, 2):
            a("v_max3_f32 v%d, v%d, v%d, v%d" % (M, M, SP + k, SP + k + 1))
        a("ds_bpermute_b32 v%d, v%d, v%d" % (T0, X16, M))
        a("s_waitcnt lgkmcnt(0)")
        a("v_max_f32 v%d, v%d, v%d" % (M, M, T0))
        a("ds_bpermute_b32 v%d, v%d, v%d" % (T0, X32, M))
        a("s_waitcnt lgkmcnt(0)")
        a("v_max_f32 v%d, v%d, v%d" % (M, M, T0))
        a("v_mul_f32 v%d, s15, v%d" % (MC, M))
        for k in range(nkq):
            a("v_fma_f32 v%d, v%d, s15, -v%d" % (SP + k, SP + k, MC))
        for k in range(nkq):
            a("v_exp_f32 v%d, v%d" % (SP + k, SP + k))
        a("v_add_f32 v%d, v%d, v%d" % (LS, SP, SP + 1))
        for k in range(2, nkq):
            a("v_add_f32 v%d, v%d, v%d" % (LS, LS, SP + k))

        def prep(kq):
            rr = ZR + 2 + 4 * (kq & 1)
            a("v_cvt_pk_bf16_f32 v%d, v%d, v%d" % (T1, SP + kq, SP + kq))
            a("v_and_b32 v%d, v%d, v%d" % (rr, T1, MA))
            a("v_and_b32 v%d, v%d, v%d" % (rr + 1, T1, MB))

        prep(0)
        for kq in range(nkq):
            li = li0 + nkq + kq
            if kq + 1 < nkq:
                prep(kq + 1)
            wait_for(li)
            r = slot(li)
            rr = ZR + 2 + 4 * (kq & 1)
            cl = "0" if kq == 0 else "v[%d:%d]" % (OL, OL + 3)
            ch = "0" if kq == 0 else "v[%d:%d]" % (OH, OH + 3)
            a("v_mfma_f32_16x16x32_bf16 v[%d:%d], v[%d:%d], v[%d:%d], %s" % (OL, OL + 3, r, r + 3, rr, rr + 3, cl))
            a("v_mfma_f32_16x16x32_bf16 v[%d:%d], v[%d:%d], v[%d:%d], %s" % (OH, OH + 3, r, r + 3, rr - 2, rr + 1, ch))
            issue()
        a("ds_bpermute_b32 v%d, v%d, v%d" % (T0, X16, LS))
        a("s_waitcnt lgkmcnt(0)")
        a("v_add_f32 v%d, v%d, v%d" % (LS, LS, T0))
        a("ds_bpermute_b32 v%d, v%d, v%d" % (T0, X32, LS))
        a("s_waitcnt lgkmcnt(0)")
        a("v_add_f32 v%d, v%d, v%d" % (MC, LS, T0))
        for i in range(4):
            a("ds_write_b32 v%d, v%d offset:%d" % (LO, OL + i, beta * 16384 + 32 * i))
            a("ds_write_b32 v%d, v%d offset:%d" % (LO, OH + i, beta * 16384 + 32 * i + 16))
        a("v_lshrrev_b32 v%d, 9, v%d" % (T0, LO))
        a("v_lshlrev_b32 v%d, 3, v%d" % (T0, T0))
        a("ds_write_b64 v%d, v[%d:%d] offset:%d" % (T0, M, MC, 32768 + beta * 256))

    branch(0, 0, 32, QA)
    branch(1, 64, 4, QB)
    a("s_waitcnt lgkmcnt(0)")
    a("s_barrier")
    a("v_and_b32 v%d, 63, v0" % T0)
    a("s_lshr_b32 s6, s5, 2")
    a("s_and_b32 s7, s5, 3")
    a("s_lshl_b32 s8, s6, 14")
    a("s_lshl_b32 s9, s7, 9")
    a("s_add_u32 s8, s8, s9")
    a("v_lshlrev_b32 v%d, 3, v%d" % (T1, T0))
    a("v_add_u32 v%d, s8, v%d" % (T2, T1))
    a("s_lshl_b32 s8, s6, 8")
    a("s_lshl_b32 s9, s7, 3")
    a("s_add_u32 s8, s8, s9")
    a("v_mov_b32 v%d, s8" % T0)
    OB = 88
    MLB = 104
    for ws in range(8):
        a("ds_read_b64 v[%d:%d], v%d offset:%d" % (MLB + 2 * ws, MLB + 2 * ws + 1, T0, 32768 + ws * 32))
    for ws in range(8):
        a("ds_read_b64 v[%d:%d], v%d offset:%d" % (OB + 2 * ws, OB + 2 * ws + 1, T2, ws * 2048))
    a("s_waitcnt lgkmcnt(0)")
    a("v_max_f32 v%d, v%d, v%d" % (M, MLB, MLB + 2))
    for ws in range(2, 8, 2):
        a("v_max3_f32 v%d, v%d, v%d, v%d" % (M, M, MLB + 2 * ws, MLB + 2 * ws + 2))
    a("v_mul_f32 v%d, s15, v%d" % (MC, M))
    for ws in range(8):
        a("v_fma_f32 v%d, v%d, s15, -v%d" % (MLB + 2 * ws, MLB + 2 * ws, MC))
    for ws in range(8):
        a("v_exp_f32 v%d, v%d" % (MLB + 2 * ws, MLB + 2 * ws))
    a("v_mul_f32 v%d, v%d, v%d" % (MC, MLB, MLB + 1))
    a("v_mul_f32 v%d, v%d, v%d" % (OL, MLB, OB))
    a("v_mul_f32 v%d, v%d, v%d" % (OL + 1, MLB, OB + 1))
    for ws in range(1, 8):
        a("v_fmac_f32 v%d, v%d, v%d" % (MC, MLB + 2 * ws, MLB + 2 * ws + 1))
        a("v_fmac_f32 v%d, v%d, v%d" % (OL, MLB + 2 * ws, OB + 2 * ws))
        a("v_fmac_f32 v%d, v%d, v%d" % (OL + 1, MLB + 2 * ws, OB + 2 * ws + 1))
    a("s_lshl_b32 s8, s6, 5")
    a("s_lshl_b32 s9, s3, 2")
    a("s_add_u32 s8, s8, s9")
    a("s_add_u32 s8, s8, s7")
    a("s_lshl_b32 s8, s8, 5")
    a("s_add_u32 s8, s8, s4")
    a("s_lshl_b32 s9, s8, 9")
    a("s_add_u32 s9, s9, 0x%x" % WS_PO)
    a("buffer_store_dwordx2 v[%d:%d], v%d, s[60:63], s9 offen" % (OL, OL + 1, T1))
    a("s_lshl_b32 s9, s8, 3")
    a("s_add_u32 s9, s9, 0x%x" % WS_ML)
    a("v_mov_b32 v%d, 0" % T0)
    a("s_mov_b64 exec, 1")
    a("buffer_store_dwordx2 v[%d:%d], v%d, s[60:63], s9 offen" % (M, MC, T0))
    epilogue(a, name)
    return name, 256


def k_comb(a):
    name = "comb_kernel"
    prologue(a, name, 256)
    a("s_lshr_b32 s5, s4, 4")
    a("s_bfe_u32 s6, s4, 0x20002")
    a("s_and_b32 s7, s4, 3")
    a("s_lshl_b32 s8, s3, 2")
    a("s_add_u32 s8, s8, s6")
    a("s_mov_b32 s15, 0x%x" % f2u(C_SCALE))
    a("v_lshrrev_b32 v1, 4, v0")
    a("v_and_b32 v2, 15, v0")
    a("v_lshlrev_b32 v3, 12, v1")
    a("v_lshl_add_u32 v3, v2, 4, v3")
    a("s_lshl_b32 s9, s8, 17")
    a("s_lshl_b32 s10, s7, 8")
    a("s_add_u32 s9, s9, s10")
    a("s_lshl_b32 s11, s5, 5")
    a("s_add_u32 s11, s11, s8")
    a("v_and_b32 v4, 31, v0")
    a("v_lshlrev_b32 v5, 3, v4")
    a("s_lshl_b32 s12, s11, 8")
    a("s_add_u32 s12, s12, 0x%x" % WS_ML)
    a("v_lshrrev_b32 v6, 5, v0")
    a("v_lshlrev_b32 v7, 10, v6")
    a("v_lshl_add_u32 v7, v4, 4, v7")
    a("s_lshl_b32 s13, s11, 14")
    a("s_add_u32 s13, s13, 0x%x" % WS_PO)
    a("s_waitcnt lgkmcnt(0)")
    a("s_cmp_eq_u32 s5, 1")
    srd_sel(a, 44, 24, 34, 0x400000)
    srd(a, 48, 40, 41, WS_SIZE)
    a("buffer_load_dwordx2 v[8:9], v5, s[48:51], s12 offen")
    a("buffer_load_dwordx4 v[12:15], v7, s[48:51], s13 offen")
    a("buffer_load_dwordx4 v[16:19], v7, s[48:51], s13 offen offset:512")
    for i in range(4):
        a("buffer_load_dwordx4 v[%d:%d], v3, s[44:47], s9 offen offset:%d" % (20 + 4 * i, 23 + 4 * i, 1024 * i))
    a("v_and_b32 v10, 63, v0")
    a("v_xor_b32 v10, 16, v10")
    a("v_lshlrev_b32 v10, 2, v10")
    a("s_waitcnt vmcnt(6)")
    a("v_mov_b32 v36, v8")
    for rot in (1, 2, 4, 8):
        a("v_max_f32_dpp v36, v36, v36 row_ror:%d row_mask:0xf bank_mask:0xf" % rot)
    a("ds_bpermute_b32 v37, v10, v36")
    a("s_waitcnt lgkmcnt(0)")
    a("v_max_f32 v36, v36, v37")
    a("v_mul_f32 v36, s15, v36")
    a("v_fma_f32 v38, v8, s15, -v36")
    a("v_exp_f32 v38, v38")
    a("v_mul_f32 v39, v38, v9")
    for rot in (1, 2, 4, 8):
        a("v_add_f32_dpp v39, v39, v39 row_ror:%d row_mask:0xf bank_mask:0xf" % rot)
    a("ds_bpermute_b32 v37, v10, v39")
    a("v_lshlrev_b32 v11, 3, v6")
    a("v_add_u32 v40, 4, v11")
    a("ds_bpermute_b32 v41, v11, v38")
    a("ds_bpermute_b32 v42, v40, v38")
    a("s_waitcnt lgkmcnt(0)")
    a("v_add_f32 v39, v39, v37")
    a("v_rcp_f32 v39, v39")
    a("s_waitcnt vmcnt(4)")
    for k in range(4):
        a("v_mul_f32 v%d, v41, v%d" % (12 + k, 12 + k))
        a("v_fmac_f32 v%d, v42, v%d" % (12 + k, 16 + k))
    a("v_lshlrev_b32 v11, 9, v6")
    a("v_lshl_add_u32 v11, v4, 4, v11")
    a("ds_write_b128 v11, v[12:15]")
    a("s_waitcnt lgkmcnt(0)")
    a("s_barrier")
    a("v_and_b32 v11, 127, v0")
    a("v_lshlrev_b32 v11, 2, v11")
    for k in range(16):
        a("ds_read_b32 v%d, v11 offset:%d" % (44 + k, 512 * k))
    a("s_waitcnt lgkmcnt(0)")
    for k in range(1, 16):
        a("v_add_f32 v44, v44, v%d" % (44 + k))
    a("v_mul_f32 v44, v44, v39")
    a("v_cvt_pk_bf16_f32 v44, v44, v44")
    a("v_lshlrev_b32 v44, 16, v44")
    a("ds_write_b32 v11, v44 offset:8192")
    a("s_waitcnt lgkmcnt(0)")
    a("s_barrier")
    a("v_lshlrev_b32 v12, 4, v1")
    a("ds_read_b128 v[44:47], v12 offset:8192")
    a("s_waitcnt vmcnt(0) lgkmcnt(0)")
    for i in range(4):
        for r in range(4):
            a("v_lshlrev_b32 v37, 16, v%d" % (20 + 4 * i + r))
            a("v_and_b32 v38, 0xffff0000, v%d" % (20 + 4 * i + r))
            if i == 0:
                a("v_mul_f32 v%d, v44, v37" % (48 + 2 * r))
                a("v_mul_f32 v%d, v44, v38" % (49 + 2 * r))
            else:
                a("v_fmac_f32 v%d, v%d, v37" % (48 + 2 * r, 44 + i))
                a("v_fmac_f32 v%d, v%d, v38" % (49 + 2 * r, 44 + i))
    a("v_lshlrev_b32 v12, 9, v1")
    a("v_lshl_add_u32 v12, v2, 5, v12")
    a("ds_write_b128 v12, v[48:51] offset:16384")
    a("ds_write_b128 v12, v[52:55] offset:16400")
    a("s_waitcnt lgkmcnt(0)")
    a("s_barrier")
    a("v_cmp_gt_u32 vcc, 128, v0")
    a("s_and_saveexec_b64 s[10:11], vcc")
    a("s_cbranch_execz L_end_%s" % name)
    for k in range(32):
        a("ds_read_b32 v%d, v11 offset:%d" % (56 + k, 16384 + 512 * k))
    a("s_waitcnt lgkmcnt(0)")
    for k in range(1, 32):
        a("v_add_f32 v56, v56, v%d" % (56 + k))
    a("s_lshl_b32 s9, s5, 2")
    a("s_add_u32 s9, s9, s7")
    a("s_lshl_b32 s9, s9, 5")
    a("s_add_u32 s9, s9, s8")
    a("s_lshl_b32 s9, s9, 9")
    a("s_add_u32 s9, s9, 0x%x" % WS_Y)
    a("buffer_store_dword v56, v11, s[48:51], s9 offen")
    epilogue(a, name)
    return name, 96


def k_final(a):
    name = "final_kernel"
    prologue(a, name, 8)
    a("v_and_b32 v1, 127, v0")
    a("v_lshlrev_b32 v1, 2, v1")
    a("v_lshrrev_b32 v2, 7, v0")
    a("v_lshl_add_u32 v3, v2, 12, v1")
    a("s_lshl_b32 s9, s2, 14")
    a("s_add_u32 s9, s9, 0x%x" % WS_Y)
    a("s_waitcnt lgkmcnt(0)")
    srd(a, 48, 40, 41, WS_SIZE)
    srd(a, 52, 36, 37, 2048)
    for k in range(8):
        a("buffer_load_dword v%d, v3, s[48:51], s9 offen offset:%d" % (8 + k, 512 * k))
    a("s_waitcnt vmcnt(0)")
    for k in range(1, 8):
        a("v_add_f32 v8, v8, v%d" % (8 + k))
    a("v_lshl_add_u32 v4, v2, 9, v1")
    a("ds_write_b32 v4, v8")
    a("s_waitcnt lgkmcnt(0)")
    a("s_barrier")
    a("v_cmp_gt_u32 vcc, 128, v0")
    a("s_and_saveexec_b64 s[10:11], vcc")
    a("s_cbranch_execz L_end_%s" % name)
    for k in range(4):
        a("ds_read_b32 v%d, v1 offset:%d" % (8 + k, 512 * k))
    a("s_waitcnt lgkmcnt(0)")
    for k in range(1, 4):
        a("v_add_f32 v8, v8, v%d" % (8 + k))
    a("v_cvt_pk_bf16_f32 v8, v8, v8")
    a("v_lshrrev_b32 v1, 1, v1")
    a("s_lshl_b32 s9, s2, 8")
    a("buffer_store_short v8, v1, s[52:55], s9 offen")
    epilogue(a, name)
    return name, 24


def main():
    a = Asm()
    ks = []
    a.raw('.amdgcn_target "amdgcn-amd-amdhsa--gfx950"')
    a.raw(".text")
    ks.append(k_qproj(a))
    ks.append(k_attn(a))
    ks.append(k_comb(a))
    ks.append(k_final(a))
    body = a.finalize()
    launch = (
        "; @launch kernel=qproj_kernel grid=(256,1,1) block=(512,1,1) lds=4096\n"
        "; @launch kernel=attn_kernel grid=(256,1,1) block=(512,1,1) lds=33280\n"
        "; @launch kernel=comb_kernel grid=(256,1,1) block=(512,1,1) lds=32768\n"
        "; @launch kernel=final_kernel grid=(8,1,1) block=(512,1,1) lds=2048\n"
    )
    out = HEADER + launch + body + '.section .rodata,"a"\n'
    for n, v in ks:
        out += ".p2align 6\n" + descriptor(n, v)
    path = sys.argv[1] if len(sys.argv) > 1 else "cdna_kernels/%s.s" % NAME
    open(path, "w").write(out)


if __name__ == "__main__":
    main()
```

```python
import math
import os
import struct
import sys

sys.path.insert(0, "gen")
from asmlib import Asm

NAME = "concat_heads__gqa_block_cached__sliding_block_cached__decode"
HEADER = open("cdna_kernels/%s.s.ref" % NAME).read().split("; Override launch")[0]

WS_Q = 0
WS_ML = 0x8000
WS_Y = 0x40000
WS_PO = 0x100000
WS_SIZE = 0x300000

C_SCALE = (128 ** -0.5) * math.log2(math.e)
SPIN_LIMIT = 20000

L_QP = 0
L_QO = 4096
L_O = 8192
L_ML = 40960
L_C1 = 45056
L_OV = 53248
L_C2 = 8192
LDS_BYTES = 53760

POOL0 = 88
NSLOT = int(os.environ.get("NSLOT", "38"))
WO = 240
STAMP = int(os.environ.get("STAMP", "0"))
PACE = int(os.environ.get("PACE", "4"))


def f2u(x):
    return struct.unpack("<I", struct.pack("<f", x))[0]


def srd(a, d, lo, hi, nbytes):
    a("s_mov_b32 s%d, s%d" % (d, lo))
    a("s_and_b32 s%d, s%d, 0xffff" % (d + 1, hi))
    a("s_mov_b32 s%d, 0x%x" % (d + 2, nbytes))
    a("s_mov_b32 s%d, 0x00020000" % (d + 3))


def srd_sel(a, d, loA, loB, nbytes):
    a("s_cselect_b32 s%d, s%d, s%d" % (d, loB, loA))
    a("s_cselect_b32 s%d, s%d, s%d" % (d + 1, loB + 1, loA + 1))
    a("s_and_b32 s%d, s%d, 0xffff" % (d + 1, d + 1))
    a("s_mov_b32 s%d, 0x%x" % (d + 2, nbytes))
    a("s_mov_b32 s%d, 0x00020000" % (d + 3))


def descriptor(name, vgpr, sgpr=100):
    return """.amdhsa_kernel %s
  .amdhsa_next_free_vgpr %d
  .amdhsa_next_free_sgpr %d
  .amdhsa_accum_offset %d
  .amdhsa_group_segment_fixed_size 0
  .amdhsa_kernarg_size 104
  .amdhsa_user_sgpr_count 2
  .amdhsa_user_sgpr_kernarg_segment_ptr 1
  .amdhsa_system_sgpr_workgroup_id_x 1
.end_amdhsa_kernel
""" % (name, vgpr, sgpr, (vgpr + 3) // 4 * 4)


def stamp(a, idx, vt=87):
    if not STAMP:
        return
    lab = "L_st%d" % idx
    a("s_cmp_lg_u32 s5, 0")
    a("s_cbranch_scc1 %s" % lab)
    a("s_memrealtime s[92:93]")
    a("s_waitcnt lgkmcnt(0)")
    a("v_mov_b32 v%d, s92" % vt)
    a("s_lshl_b32 s94, s2, 6")
    a("s_add_u32 s94, s94, 0x%x" % (0x200000 + idx * 4))
    a("s_mov_b64 s[96:97], exec")
    a("s_mov_b64 exec, 1")
    a("buffer_store_dword v%d, off, s[60:63], s94" % vt)
    a("s_mov_b64 exec, s[96:97]")
    a.label(lab)


def kernel(a):
    name = NAME + "_kernel"
    a.raw(".globl %s" % name)
    a.raw(".p2align 8")
    a.raw(".type %s,@function" % name)
    a.label(name)
    a("s_cmp_ge_u32 s2, 256")
    a("s_cbranch_scc1 L_end")
    a("s_load_dwordx16 s[16:31], s[0:1], 0")
    a("s_load_dwordx8 s[32:39], s[0:1], 64")
    a("s_load_dwordx2 s[40:41], s[0:1], 96")
    a("s_and_b32 s3, s2, 7")
    a("s_lshr_b32 s4, s2, 3")

    VK, VV, MA, MB, X16, X32, LO, T0, T1 = 1, 2, 3, 4, 5, 6, 7, 8, 9
    QA, QB = 10, 14
    ZR = 18
    OL, OH = 28, 32
    M, MC, LS, T2 = 36, 37, 38, 39
    DB = 40
    SP = 56
    a("v_and_b32 v%d, 63, v0" % T0)
    a("v_lshrrev_b32 v%d, 6, v0" % T1)
    a("v_readfirstlane_b32 s5, v%d" % T1)
    a("s_lshr_b32 s84, s4, 4")
    a("s_and_b32 s85, s4, 15")
    a("s_bfe_u32 s86, s4, 0x20002")
    a("s_and_b32 s87, s4, 3")
    a("s_lshl_b32 s88, s3, 2")
    a("s_add_u32 s88, s88, s86")
    a("s_lshl_b32 s14, s3, 10")
    a("s_lshl_b32 s89, s85, 6")
    a("s_add_u32 s89, s89, s14")
    QW, QX, QACC = 56, 72, 76
    a("v_lshlrev_b32 v84, 6, v%d" % T1)
    a("v_lshrrev_b32 v85, 2, v%d" % T0)
    a("v_add_u32 v84, v84, v85")
    a("v_lshlrev_b32 v85, 13, v84")
    a("v_and_b32 v86, 3, v0")
    a("v_lshl_add_u32 v85, v86, 4, v85")
    a("v_lshlrev_b32 v84, 1, v84")
    a("v_lshrrev_b32 v87, 4, v0")
    a("v_lshlrev_b32 v87, 12, v87")
    a("v_and_b32 v%d, 15, v0" % T2)
    a("v_lshl_add_u32 v87, v%d, 4, v87" % T2)
    a("s_lshl_b32 s9, s88, 17")
    a("s_lshl_b32 s10, s87, 8")
    a("s_add_u32 s11, s9, s10")
    a("s_waitcnt lgkmcnt(0)")
    a("s_cmp_eq_u32 s84, 1")
    srd_sel(a, 64, 22, 32, 0x400000)
    a("s_cmp_eq_u32 s84, 1")
    srd_sel(a, 68, 16, 26, 1024)
    a("s_cmp_eq_u32 s84, 1")
    srd_sel(a, 72, 24, 34, 0x400000)
    for i in range(4):
        a("s_add_u32 s9, s89, %d" % (i * 131072))
        a("buffer_load_dwordx4 v[%d:%d], v85, s[64:67], s9 offen nt" % (QW + 4 * i, QW + 3 + 4 * i))
    for i in range(4):
        a("buffer_load_ushort v%d, v84, s[68:71], 0 offen offset:%d" % (QX + i, 32 * i))
    for i in range(4):
        a("buffer_load_dwordx4 v[%d:%d], v87, s[72:75], s11 offen offset:%d nt" % (WO + 4 * i, WO + 3 + 4 * i, 1024 * i))
    srd(a, 44, 18, 19, 0x4000000)
    srd(a, 48, 20, 21, 0x4000000)
    srd(a, 52, 28, 29, 0x4000000)
    srd(a, 56, 30, 31, 0x4000000)
    srd(a, 60, 40, 41, WS_SIZE)
    srd(a, 76, 38, 39, 256)
    srd(a, 80, 36, 37, 2048)
    a("v_lshlrev_b32 v%d, 4, v%d" % (VV, T0))
    a("v_bfe_u32 v%d, v%d, 2, 2" % (T1, T0))
    a("v_lshlrev_b32 v%d, 8, v%d" % (VK, T1))
    a("v_lshrrev_b32 v%d, 4, v%d" % (T2, T0))
    a("v_lshl_add_u32 v%d, v%d, 6, v%d" % (VK, T2, VK))
    a("v_and_b32 v%d, 3, v%d" % (M, T0))
    a("v_lshl_add_u32 v%d, v%d, 4, v%d" % (VK, M, VK))
    a("v_lshlrev_b32 v%d, 9, v%d" % (LO, T1))
    a("v_lshl_add_u32 v%d, v%d, 7, v%d" % (LO, T2, LO))
    a("v_lshl_add_u32 v%d, v%d, 2, v%d" % (LO, M, LO))
    a("s_lshl_b32 s6, s5, 11")
    a("v_add_u32 v%d, s6, v%d" % (LO, LO))
    a("s_lshl_b32 s6, s3, 23")
    a("s_lshl_b32 s7, s4, 18")
    a("s_lshl_b32 s8, s5, 15")
    a("s_add_u32 s7, s7, s8")
    a("s_add_u32 s12, s6, s7")
    a("s_lshl_b32 s7, s4, 15")
    a("s_lshl_b32 s8, s5, 12")
    a("s_add_u32 s7, s7, s8")
    a("s_add_u32 s13, s6, s7")
    a("s_add_u32 s13, s13, %d" % (28672 * 256))
    a("s_mov_b32 s15, 0x%x" % f2u(C_SCALE))

    loads = []
    for kq in range(32):
        loads.append((44, 12, VK, kq))
    for kq in range(32):
        loads.append((48, 12, VV, kq))
    for kq in range(4):
        loads.append((52, 13, VK, kq))
    for kq in range(4):
        loads.append((56, 13, VV, kq))
    NL = len(loads)
    state = {"issued": 0}

    def slot(i):
        return POOL0 + 4 * (i % NSLOT)

    def emit_load(i):
        sr, sb, vo, kq = loads[i]
        a("s_add_u32 s6, s%d, %d" % (sb, (kq >> 2) * 4096))
        r = slot(i)
        a("buffer_load_dwordx4 v[%d:%d], v%d, s[%d:%d], s6 offen offset:%d nt" % (r, r + 3, vo, sr, sr + 3, (kq & 3) * 1024))

    def issue():
        i = state["issued"]
        if i >= NL:
            return
        emit_load(i)
        state["issued"] += 1

    def wait_for(i):
        n = state["issued"] - (i + 1)
        a("s_waitcnt vmcnt(%d)" % n)

    stamp(a, 0)
    a("s_cmp_eq_u32 s5, 0")
    a("s_cbranch_scc1 L_w0_pre")
    for i in range(PACE):
        emit_load(i)
    a("s_waitcnt vmcnt(%d)" % (PACE + 4))
    a("s_branch L_q_calc")
    a.label("L_w0_pre")
    a("v_mov_b32 v88, 0")
    a("v_mov_b32 v89, 0")
    a("v_mov_b32 v90, 0")
    a("v_mov_b32 v91, 0")
    a("v_lshrrev_b32 v92, 5, v%d" % T0)
    a("v_lshlrev_b32 v92, 14, v92")
    a("v_and_b32 v93, 31, v%d" % T0)
    a("v_lshl_add_u32 v92, v93, 4, v92")
    a("s_lshl_b32 s6, s3, 16")
    a("s_lshl_b32 s7, s4, 9")
    a("s_add_u32 s6, s6, s7")
    a("s_add_u32 s6, s6, 0x%x" % WS_PO)
    for k in range(4):
        a("s_add_u32 s7, s6, 0x%x" % ((k >> 1) * 32 * 32 * 512 + (k & 1) * 2 * 16384))
        a("buffer_store_dwordx4 v[88:91], v92, s[60:63], s7 offen sc1")
    a("v_lshrrev_b32 v92, 2, v%d" % T0)
    a("v_lshlrev_b32 v92, 13, v92")
    a("v_and_b32 v93, 3, v%d" % T0)
    a("v_lshl_add_u32 v92, v93, 8, v92")
    a("s_lshl_b32 s6, s3, 10")
    a("s_lshl_b32 s7, s4, 3")
    a("s_add_u32 s6, s6, s7")
    a("s_add_u32 s6, s6, 0x%x" % WS_ML)
    a("s_mov_b64 exec, 0xff")
    a("buffer_store_dwordx2 v[88:89], v92, s[60:63], s6 offen sc1")
    a("s_mov_b32 exec_lo, -1")
    a("s_mov_b32 exec_hi, 0")
    a("s_lshl_b32 s6, s84, 2")
    a("s_add_u32 s6, s6, s87")
    a("s_lshl_b32 s6, s6, 5")
    a("s_add_u32 s6, s6, s88")
    a("s_lshl_b32 s6, s6, 9")
    a("s_add_u32 s6, s6, 0x%x" % WS_Y)
    a("buffer_store_dwordx4 v[88:91], v%d, s[60:63], s6 offen sc1" % VV)
    a("s_mov_b64 exec, -1")
    a("s_waitcnt vmcnt(10)")
    a.label("L_q_calc")
    for i in range(4):
        a("v_lshlrev_b32 v84, 16, v%d" % (QX + i))
        for r in range(4):
            a("v_lshlrev_b32 v85, 16, v%d" % (QW + 4 * i + r))
            a("v_and_b32 v86, 0xffff0000, v%d" % (QW + 4 * i + r))
            if i == 0:
                a("v_mul_f32 v%d, v84, v85" % (QACC + 2 * r))
                a("v_mul_f32 v%d, v84, v86" % (QACC + 1 + 2 * r))
            else:
                a("v_fmac_f32 v%d, v84, v85" % (QACC + 2 * r))
                a("v_fmac_f32 v%d, v84, v86" % (QACC + 1 + 2 * r))
    for rot in (4, 8):
        for j in range(8):
            a("v_add_f32_dpp v%d, v%d, v%d row_ror:%d row_mask:0xf bank_mask:0xf" % (QACC + j, QACC + j, QACC + j, rot))
    a("v_lshrrev_b32 v84, 4, v0")
    a("v_lshlrev_b32 v84, 7, v84")
    a("v_and_b32 v86, 3, v0")
    a("v_lshl_add_u32 v84, v86, 5, v84")
    a("ds_write_b128 v84, v[%d:%d] offset:%d" % (QACC, QACC + 3, L_QP))
    a("ds_write_b128 v84, v[%d:%d] offset:%d" % (QACC + 4, QACC + 7, L_QP + 16))
    a("v_mov_b32 v%d, 0" % MA)
    a("v_mov_b32 v%d, 0" % MB)
    a("v_mov_b32 v%d, 0xffff" % MC)
    a("v_mov_b32 v%d, 0xffff0000" % LS)
    a("v_cmp_eq_u32 vcc, 0, v%d" % M)
    a("v_cndmask_b32 v%d, v%d, v%d, vcc" % (MA, MA, MC))
    a("v_cmp_eq_u32 vcc, 1, v%d" % M)
    a("v_cndmask_b32 v%d, v%d, v%d, vcc" % (MA, MA, LS))
    a("v_cmp_eq_u32 vcc, 2, v%d" % M)
    a("v_cndmask_b32 v%d, v%d, v%d, vcc" % (MB, MB, MC))
    a("v_cmp_eq_u32 vcc, 3, v%d" % M)
    a("v_cndmask_b32 v%d, v%d, v%d, vcc" % (MB, MB, LS))
    a("v_xor_b32 v%d, 16, v%d" % (X16, T0))
    a("v_lshlrev_b32 v%d, 2, v%d" % (X16, X16))
    a("v_xor_b32 v%d, 32, v%d" % (X32, T0))
    a("v_lshlrev_b32 v%d, 2, v%d" % (X32, X32))
    for z in (0, 1, 4, 5, 8, 9):
        a("v_mov_b32 v%d, 0" % (ZR + z))
    a("s_waitcnt lgkmcnt(0)")
    a("s_barrier")
    a("s_cmp_eq_u32 s5, 0")
    a("s_cbranch_scc1 L_w0_q")
    for i in range(PACE, NSLOT):
        a("s_waitcnt vmcnt(%d)" % (PACE - 1))
        emit_load(i)
    a("s_branch L_q_wait")
    a.label("L_w0_q")
    a("v_and_b32 v84, 15, v%d" % T0)
    a("v_lshlrev_b32 v85, 3, v84")
    for k in range(32):
        a("ds_read_b64 v[%d:%d], v85 offset:%d" % (88 + 2 * k, 89 + 2 * k, L_QP + 128 * k))
    a("s_waitcnt lgkmcnt(0)")
    for k in range(1, 32):
        a("v_add_f32 v88, v88, v%d" % (88 + 2 * k))
        a("v_add_f32 v89, v89, v%d" % (89 + 2 * k))
    a("v_cvt_pk_bf16_f32 v88, v88, v89")
    a("v_lshlrev_b32 v85, 2, v84")
    a("s_lshl_b32 s9, s84, 13")
    a("s_add_u32 s9, s9, s89")
    a("s_mov_b64 exec, 0xffff")
    a("buffer_store_dword v88, v85, s[60:63], s9 offen offset:%d sc1" % WS_Q)
    a("s_mov_b64 exec, -1")
    a("s_waitcnt vmcnt(0)")
    a("v_mov_b32 v88, 1")
    a("s_lshl_b32 s9, s3, 5")
    a("s_mov_b64 exec, 1")
    a("buffer_atomic_add v88, off, s[76:79], s9 sc1")
    a("s_mov_b64 exec, -1")
    stamp(a, 1)
    a("v_and_b32 v84, 7, v%d" % T0)
    a("v_lshlrev_b32 v84, 5, v84")
    a("s_mov_b32 s90, 0")
    a.label("L_pollq")
    a("buffer_load_dword v88, v84, s[76:79], 0 offen sc1")
    a("s_waitcnt vmcnt(0)")
    a("v_cmp_ne_u32 vcc, 32, v88")
    a("s_cmp_eq_u64 vcc, 0")
    a("s_cbranch_scc1 L_pollq_done")
    a("s_add_u32 s90, s90, 1")
    a("s_cmp_lt_u32 s90, %d" % SPIN_LIMIT)
    a("s_sleep 4")
    a("s_cbranch_scc1 L_pollq")
    a.label("L_pollq_done")
    a("buffer_load_dwordx4 v[88:91], v%d, s[60:63], s14 offen offset:%d sc1" % (VK, WS_Q))
    a("s_add_u32 s6, s14, 8192")
    a("buffer_load_dwordx4 v[92:95], v%d, s[60:63], s6 offen offset:%d sc1" % (VK, WS_Q))
    a("s_waitcnt vmcnt(0)")
    a("ds_write_b128 v%d, v[88:91] offset:%d" % (VV, L_QO))
    a("ds_write_b128 v%d, v[92:95] offset:%d" % (VV, L_QO + 1024))
    a("s_waitcnt lgkmcnt(0)")
    stamp(a, 2)
    for i in range(NSLOT):
        emit_load(i)
    a.label("L_q_wait")
    state["issued"] = NSLOT
    a("s_barrier")
    a("ds_read_b128 v[%d:%d], v%d offset:%d" % (QA, QA + 3, VV, L_QO))
    a("ds_read_b128 v[%d:%d], v%d offset:%d" % (QB, QB + 3, VV, L_QO + 1024))
    a("s_waitcnt lgkmcnt(0)")

    def reduce_diag(kq):
        d = DB + 4 * (kq % 4)
        s = SP + kq
        a("v_mov_b32_dpp v%d, v%d quad_perm:[0,0,0,0] row_mask:0xf bank_mask:0xf" % (s, d))
        for i in (1, 2, 3):
            a("v_add_f32_dpp v%d, v%d, v%d quad_perm:[%d,%d,%d,%d] row_mask:0xf bank_mask:0xf" % (s, d + i, s, i, i, i, i))

    def branch(beta, li0, nkq, q):
        for kq in range(nkq):
            li = li0 + kq
            wait_for(li)
            d = DB + 4 * (kq % 4)
            r = slot(li)
            a("v_mfma_f32_16x16x32_bf16 v[%d:%d], v[%d:%d], v[%d:%d], 0" % (d, d + 3, r, r + 3, q, q + 3))
            issue()
            if kq >= 2:
                reduce_diag(kq - 2)
        reduce_diag(nkq - 2)
        reduce_diag(nkq - 1)
        a("v_max_f32 v%d, v%d, v%d" % (M, SP, SP + 1))
        for k in range(2, nkq, 2):
            a("v_max3_f32 v%d, v%d, v%d, v%d" % (M, M, SP + k, SP + k + 1))
        a("ds_bpermute_b32 v%d, v%d, v%d" % (T0, X16, M))
        a("s_waitcnt lgkmcnt(0)")
        a("v_max_f32 v%d, v%d, v%d" % (M, M, T0))
        a("ds_bpermute_b32 v%d, v%d, v%d" % (T0, X32, M))
        a("s_waitcnt lgkmcnt(0)")
        a("v_max_f32 v%d, v%d, v%d" % (M, M, T0))
        a("v_mul_f32 v%d, s15, v%d" % (MC, M))
        for k in range(nkq):
            a("v_fma_f32 v%d, v%d, s15, -v%d" % (SP + k, SP + k, MC))
        for k in range(nkq):
            a("v_exp_f32 v%d, v%d" % (SP + k, SP + k))
        a("v_add_f32 v%d, v%d, v%d" % (LS, SP, SP + 1))
        for k in range(2, nkq):
            a("v_add_f32 v%d, v%d, v%d" % (LS, LS, SP + k))

        def prep(kq):
            rr = ZR + 2 + 4 * (kq & 1)
            a("v_cvt_pk_bf16_f32 v%d, v%d, v%d" % (T1, SP + kq, SP + kq))
            a("v_and_b32 v%d, v%d, v%d" % (rr, T1, MA))
            a("v_and_b32 v%d, v%d, v%d" % (rr + 1, T1, MB))

        prep(0)
        for kq in range(nkq):
            li = li0 + nkq + kq
            if kq + 1 < nkq:
                prep(kq + 1)
            wait_for(li)
            r = slot(li)
            rr = ZR + 2 + 4 * (kq & 1)
            cl = "0" if kq == 0 else "v[%d:%d]" % (OL, OL + 3)
            ch = "0" if kq == 0 else "v[%d:%d]" % (OH, OH + 3)
            a("v_mfma_f32_16x16x32_bf16 v[%d:%d], v[%d:%d], v[%d:%d], %s" % (OL, OL + 3, r, r + 3, rr, rr + 3, cl))
            a("v_mfma_f32_16x16x32_bf16 v[%d:%d], v[%d:%d], v[%d:%d], %s" % (OH, OH + 3, r, r + 3, rr - 2, rr + 1, ch))
            issue()
        a("ds_bpermute_b32 v%d, v%d, v%d" % (T0, X16, LS))
        a("s_waitcnt lgkmcnt(0)")
        a("v_add_f32 v%d, v%d, v%d" % (LS, LS, T0))
        a("ds_bpermute_b32 v%d, v%d, v%d" % (T0, X32, LS))
        a("s_waitcnt lgkmcnt(0)")
        a("v_add_f32 v%d, v%d, v%d" % (MC, LS, T0))
        for i in range(4):
            a("ds_write_b32 v%d, v%d offset:%d" % (LO, OL + i, L_O + beta * 16384 + 32 * i))
            a("ds_write_b32 v%d, v%d offset:%d" % (LO, OH + i, L_O + beta * 16384 + 32 * i + 16))
        a("v_lshrrev_b32 v%d, 9, v%d" % (T0, LO))
        a("v_lshlrev_b32 v%d, 3, v%d" % (T0, T0))
        a("ds_write_b64 v%d, v[%d:%d] offset:%d" % (T0, M, MC, L_ML + beta * 256))

    branch(0, 0, 32, QA)
    branch(1, 64, 4, QB)
    a("s_waitcnt lgkmcnt(0)")
    stamp(a, 3)
    a("s_barrier")
    a("v_and_b32 v%d, 63, v0" % T0)
    a("s_lshr_b32 s6, s5, 2")
    a("s_and_b32 s7, s5, 3")
    a("s_lshl_b32 s8, s6, 14")
    a("s_lshl_b32 s9, s7, 9")
    a("s_add_u32 s8, s8, s9")
    a("v_lshlrev_b32 v%d, 3, v%d" % (T1, T0))
    a("v_add_u32 v%d, s8, v%d" % (T2, T1))
    a("s_lshl_b32 s8, s6, 8")
    a("s_lshl_b32 s9, s7, 3")
    a("s_add_u32 s8, s8, s9")
    a("v_mov_b32 v%d, s8" % T0)
    OB = 88
    MLB = 104
    for ws in range(8):
        a("ds_read_b64 v[%d:%d], v%d offset:%d" % (MLB + 2 * ws, MLB + 2 * ws + 1, T0, L_ML + ws * 32))
    for ws in range(8):
        a("ds_read_b64 v[%d:%d], v%d offset:%d" % (OB + 2 * ws, OB + 2 * ws + 1, T2, L_O + ws * 2048))
    a("s_waitcnt lgkmcnt(0)")
    a("v_max_f32 v%d, v%d, v%d" % (M, MLB, MLB + 2))
    for ws in range(2, 8, 2):
        a("v_max3_f32 v%d, v%d, v%d, v%d" % (M, M, MLB + 2 * ws, MLB + 2 * ws + 2))
    a("v_mul_f32 v%d, s15, v%d" % (MC, M))
    for ws in range(8):
        a("v_fma_f32 v%d, v%d, s15, -v%d" % (MLB + 2 * ws, MLB + 2 * ws, MC))
    for ws in range(8):
        a("v_exp_f32 v%d, v%d" % (MLB + 2 * ws, MLB + 2 * ws))
    a("v_mul_f32 v%d, v%d, v%d" % (MC, MLB, MLB + 1))
    a("v_mul_f32 v%d, v%d, v%d" % (OL, MLB, OB))
    a("v_mul_f32 v%d, v%d, v%d" % (OL + 1, MLB, OB + 1))
    for ws in range(1, 8):
        a("v_fmac_f32 v%d, v%d, v%d" % (MC, MLB + 2 * ws, MLB + 2 * ws + 1))
        a("v_fmac_f32 v%d, v%d, v%d" % (OL, MLB + 2 * ws, OB + 2 * ws))
        a("v_fmac_f32 v%d, v%d, v%d" % (OL + 1, MLB + 2 * ws, OB + 2 * ws + 1))
    for r in (OL, OL + 1, M, MC):
        a("v_add_f32 v%d, 0, v%d" % (r, r))
        a("v_xor_b32 v%d, 0x80000000, v%d" % (r, r))
    a("s_lshl_b32 s8, s6, 5")
    a("s_lshl_b32 s9, s3, 2")
    a("s_add_u32 s8, s8, s9")
    a("s_add_u32 s8, s8, s7")
    a("s_lshl_b32 s8, s8, 5")
    a("s_add_u32 s8, s8, s4")
    a("s_lshl_b32 s9, s8, 9")
    a("s_add_u32 s9, s9, 0x%x" % WS_PO)
    a("buffer_store_dwordx2 v[%d:%d], v%d, s[60:63], s9 offen sc1" % (OL, OL + 1, T1))
    a("s_lshl_b32 s9, s8, 3")
    a("s_add_u32 s9, s9, 0x%x" % WS_ML)
    a("s_mov_b64 exec, 1")
    a("buffer_store_dwordx2 v[%d:%d], off, s[60:63], s9 sc1" % (M, MC))
    a("s_mov_b64 exec, -1")
    stamp(a, 4)

    a("v_lshrrev_b32 v1, 4, v0")
    a("v_and_b32 v2, 15, v0")
    a("s_lshl_b32 s11, s84, 5")
    a("s_add_u32 s11, s11, s88")
    a("v_and_b32 v4, 31, v0")
    a("v_lshlrev_b32 v5, 3, v4")
    a("s_lshl_b32 s12, s11, 8")
    a("s_add_u32 s12, s12, 0x%x" % WS_ML)
    a("v_lshrrev_b32 v6, 5, v0")
    a("v_lshlrev_b32 v7, 10, v6")
    a("v_lshl_add_u32 v7, v4, 4, v7")
    a("s_lshl_b32 s13, s11, 14")
    a("s_add_u32 s13, s13, 0x%x" % WS_PO)
    a("v_and_b32 v10, 63, v0")
    a("v_xor_b32 v10, 16, v10")
    a("v_lshlrev_b32 v10, 2, v10")
    a("s_mov_b32 s90, 0")
    a.label("L_poll1")
    a("buffer_load_dwordx2 v[8:9], v5, s[60:63], s12 offen sc1")
    a("s_waitcnt vmcnt(0)")
    a("v_min_u32 v20, v8, v9")
    a("v_cmp_eq_u32 vcc, 0, v20")
    a("s_cmp_eq_u64 vcc, 0")
    a("s_cbranch_scc1 L_poll1_done")
    a("s_add_u32 s90, s90, 1")
    a("s_cmp_lt_u32 s90, %d" % SPIN_LIMIT)
    a("s_sleep 1")
    a("s_cbranch_scc1 L_poll1")
    a.label("L_poll1_done")
    a("s_mov_b32 s90, 0")
    a.label("L_poll2")
    a("buffer_load_dwordx4 v[12:15], v7, s[60:63], s13 offen sc1")
    a("buffer_load_dwordx4 v[16:19], v7, s[60:63], s13 offen offset:512 sc1")
    a("s_waitcnt vmcnt(0)")
    a("v_min3_u32 v20, v12, v13, v14")
    a("v_min3_u32 v20, v20, v15, v16")
    a("v_min3_u32 v20, v20, v17, v18")
    a("v_min_u32 v20, v20, v19")
    a("v_cmp_eq_u32 vcc, 0, v20")
    a("s_cmp_eq_u64 vcc, 0")
    a("s_cbranch_scc1 L_poll2_done")
    a("s_add_u32 s90, s90, 1")
    a("s_cmp_lt_u32 s90, %d" % SPIN_LIMIT)
    a("s_cbranch_scc1 L_poll2")
    a.label("L_poll2_done")
    stamp(a, 5)
    a("v_xor_b32 v8, 0x80000000, v8")
    a("v_xor_b32 v9, 0x80000000, v9")
    a("v_mov_b32 v36, v8")
    for rot in (1, 2, 4, 8):
        a("v_max_f32_dpp v36, v36, v36 row_ror:%d row_mask:0xf bank_mask:0xf" % rot)
    a("ds_bpermute_b32 v37, v10, v36")
    a("s_waitcnt lgkmcnt(0)")
    a("v_max_f32 v36, v36, v37")
    a("v_mul_f32 v36, s15, v36")
    a("v_fma_f32 v38, v8, s15, -v36")
    a("v_exp_f32 v38, v38")
    a("v_mul_f32 v39, v38, v9")
    for rot in (1, 2, 4, 8):
        a("v_add_f32_dpp v39, v39, v39 row_ror:%d row_mask:0xf bank_mask:0xf" % rot)
    a("ds_bpermute_b32 v37, v10, v39")
    a("v_lshlrev_b32 v11, 3, v6")
    a("v_add_u32 v40, 4, v11")
    a("ds_bpermute_b32 v41, v11, v38")
    a("ds_bpermute_b32 v42, v40, v38")
    a("s_waitcnt lgkmcnt(0)")
    a("v_add_f32 v39, v39, v37")
    a("v_rcp_f32 v39, v39")
    for k in range(4):
        a("v_mul_f32 v%d, v41, -v%d" % (12 + k, 12 + k))
        a("v_fma_f32 v%d, v42, -v%d, v%d" % (12 + k, 16 + k, 12 + k))
    a("v_lshlrev_b32 v11, 9, v6")
    a("v_lshl_add_u32 v11, v4, 4, v11")
    a("ds_write_b128 v11, v[12:15] offset:%d" % L_C1)
    a("s_waitcnt lgkmcnt(0)")
    a("s_barrier")
    a("v_and_b32 v11, 127, v0")
    a("v_lshlrev_b32 v11, 2, v11")
    for k in range(16):
        a("ds_read_b32 v%d, v11 offset:%d" % (44 + k, L_C1 + 512 * k))
    a("s_waitcnt lgkmcnt(0)")
    for k in range(1, 16):
        a("v_add_f32 v44, v44, v%d" % (44 + k))
    a("v_mul_f32 v44, v44, v39")
    a("v_cvt_pk_bf16_f32 v44, v44, v44")
    a("v_lshlrev_b32 v44, 16, v44")
    a("ds_write_b32 v11, v44 offset:%d" % L_OV)
    a("s_waitcnt lgkmcnt(0)")
    a("s_barrier")
    a("v_lshlrev_b32 v12, 4, v1")
    a("ds_read_b128 v[44:47], v12 offset:%d" % L_OV)
    a("s_waitcnt lgkmcnt(0)")
    for i in range(4):
        for r in range(4):
            a("v_lshlrev_b32 v37, 16, v%d" % (WO + 4 * i + r))
            a("v_and_b32 v38, 0xffff0000, v%d" % (WO + 4 * i + r))
            if i == 0:
                a("v_mul_f32 v%d, v44, v37" % (48 + 2 * r))
                a("v_mul_f32 v%d, v44, v38" % (49 + 2 * r))
            else:
                a("v_fmac_f32 v%d, v%d, v37" % (48 + 2 * r, 44 + i))
                a("v_fmac_f32 v%d, v%d, v38" % (49 + 2 * r, 44 + i))
    a("v_lshlrev_b32 v12, 9, v1")
    a("v_lshl_add_u32 v12, v2, 5, v12")
    a("ds_write_b128 v12, v[48:51] offset:%d" % L_C2)
    a("ds_write_b128 v12, v[52:55] offset:%d" % (L_C2 + 16))
    a("s_waitcnt lgkmcnt(0)")
    a("s_barrier")
    a("s_cmp_ge_u32 s5, 2")
    a("s_cbranch_scc1 L_after_y")
    for k in range(32):
        a("ds_read_b32 v%d, v11 offset:%d" % (56 + k, L_C2 + 512 * k))
    a("s_waitcnt lgkmcnt(0)")
    for k in range(1, 32):
        a("v_add_f32 v56, v56, v%d" % (56 + k))
    a("v_add_f32 v56, 0, v56")
    a("v_xor_b32 v56, 0x80000000, v56")
    a("s_lshl_b32 s9, s84, 2")
    a("s_add_u32 s9, s9, s87")
    a("s_lshl_b32 s9, s9, 5")
    a("s_add_u32 s9, s9, s88")
    a("s_lshl_b32 s9, s9, 9")
    a("s_add_u32 s9, s9, 0x%x" % WS_Y)
    a("buffer_store_dword v56, v11, s[60:63], s9 offen sc1")
    a.label("L_after_y")
    stamp(a, 6)
    a("s_lshl_b32 s9, s84, 2")
    a("s_add_u32 s9, s9, s87")
    a("s_cmp_lg_u32 s86, 0")
    a("s_cbranch_scc1 L_end")
    a("s_cmp_lg_u32 s9, s3")
    a("s_cbranch_scc1 L_end")
    a("s_lshl_b32 s10, s9, 14")
    a("s_add_u32 s10, s10, 0x%x" % WS_Y)
    a("s_mov_b32 s90, 0")
    a.label("L_poll3")
    a("buffer_load_dwordx4 v[12:15], v7, s[60:63], s10 offen sc1")
    a("buffer_load_dwordx4 v[16:19], v7, s[60:63], s10 offen offset:512 sc1")
    a("s_waitcnt vmcnt(0)")
    a("v_min3_u32 v20, v12, v13, v14")
    a("v_min3_u32 v20, v20, v15, v16")
    a("v_min3_u32 v20, v20, v17, v18")
    a("v_min_u32 v20, v20, v19")
    a("v_cmp_eq_u32 vcc, 0, v20")
    a("s_cmp_eq_u64 vcc, 0")
    a("s_cbranch_scc1 L_poll3_done")
    a("s_add_u32 s90, s90, 1")
    a("s_cmp_lt_u32 s90, %d" % SPIN_LIMIT)
    a("s_cbranch_scc1 L_poll3")
    a.label("L_poll3_done")
    for k in range(4):
        a("v_sub_f32 v%d, -v%d, v%d" % (12 + k, 12 + k, 16 + k))
    a("v_lshlrev_b32 v12, 9, v6") if False else None
    a("v_lshlrev_b32 v21, 9, v6")
    a("v_lshl_add_u32 v21, v4, 4, v21")
    a("ds_write_b128 v21, v[12:15] offset:%d" % L_C1)
    a("s_waitcnt lgkmcnt(0)")
    a("s_barrier")
    a("s_cmp_ge_u32 s5, 2")
    a("s_cbranch_scc1 L_end")
    for k in range(16):
        a("ds_read_b32 v%d, v11 offset:%d" % (44 + k, L_C1 + 512 * k))
    a("s_waitcnt lgkmcnt(0)")
    for k in range(1, 16):
        a("v_add_f32 v44, v44, v%d" % (44 + k))
    a("v_cvt_pk_bf16_f32 v44, v44, v44")
    a("v_lshrrev_b32 v11, 1, v11")
    a("s_lshl_b32 s9, s9, 8")
    a("buffer_store_short v44, v11, s[80:83], s9 offen")
    stamp(a, 7)
    a.label("L_end")
    a("s_endpgm")
    return name, 256


def main():
    a = Asm()
    a.raw('.amdgcn_target "amdgcn-amd-amdhsa--gfx950"')
    a.raw(".text")
    n, v = kernel(a)
    body = a.finalize()
    launch = "; @launch grid=(256,1,1) block=(512,1,1) lds=%d\n" % LDS_BYTES
    out = HEADER + launch + body + '.section .rodata,"a"\n.p2align 6\n' + descriptor(n, v)
    path = sys.argv[1] if len(sys.argv) > 1 else "cdna_kernels/%s.s" % NAME
    open(path, "w").write(out)


if __name__ == "__main__":
    main()
```

```python
import math
import os
import struct
import sys

sys.path.insert(0, "gen")
from asmlib import Asm

NAME = "concat_heads__gqa_block_cached__sliding_block_cached__decode"
HEADER = open("cdna_kernels/%s.s.ref" % NAME).read().split("; Override launch")[0]

WS_Q = 0
WS_ML = 0x8000
WS_Y = 0x40000
WS_PO = 0x100000
WS_SIZE = 0x300000

C_SCALE = (128 ** -0.5) * math.log2(math.e)
SPIN_LIMIT = 20000

L_QP = 0
L_QO = 4096
L_O = 8192
L_ML = 40960
L_C1 = 45056
L_OV = 53248
L_C2 = 8192
LDS_BYTES = 53760

POOL0 = 88
NSLOT = int(os.environ.get("NSLOT", "38"))
WO = 240
STAMP = int(os.environ.get("STAMP", "0"))
PACE = int(os.environ.get("PACE", "4"))


def f2u(x):
    return struct.unpack("<I", struct.pack("<f", x))[0]


def srd(a, d, lo, hi, nbytes):
    a("s_mov_b32 s%d, s%d" % (d, lo))
    a("s_and_b32 s%d, s%d, 0xffff" % (d + 1, hi))
    a("s_mov_b32 s%d, 0x%x" % (d + 2, nbytes))
    a("s_mov_b32 s%d, 0x00020000" % (d + 3))


def srd_sel(a, d, loA, loB, nbytes):
    a("s_cselect_b32 s%d, s%d, s%d" % (d, loB, loA))
    a("s_cselect_b32 s%d, s%d, s%d" % (d + 1, loB + 1, loA + 1))
    a("s_and_b32 s%d, s%d, 0xffff" % (d + 1, d + 1))
    a("s_mov_b32 s%d, 0x%x" % (d + 2, nbytes))
    a("s_mov_b32 s%d, 0x00020000" % (d + 3))


def descriptor(name, vgpr, sgpr=100):
    return """.amdhsa_kernel %s
  .amdhsa_next_free_vgpr %d
  .amdhsa_next_free_sgpr %d
  .amdhsa_accum_offset %d
  .amdhsa_group_segment_fixed_size 0
  .amdhsa_kernarg_size 104
  .amdhsa_user_sgpr_count 2
  .amdhsa_user_sgpr_kernarg_segment_ptr 1
  .amdhsa_system_sgpr_workgroup_id_x 1
.end_amdhsa_kernel
""" % (name, vgpr, sgpr, (vgpr + 3) // 4 * 4)


def stamp(a, idx, vt=87):
    if not STAMP:
        return
    lab = "L_st%d" % idx
    a("s_cmp_lg_u32 s5, 0")
    a("s_cbranch_scc1 %s" % lab)
    a("s_memrealtime s[92:93]")
    a("s_waitcnt lgkmcnt(0)")
    a("v_mov_b32 v%d, s92" % vt)
    a("s_lshl_b32 s94, s2, 6")
    a("s_add_u32 s94, s94, 0x%x" % (0x200000 + idx * 4))
    a("s_mov_b64 s[96:97], exec")
    a("s_mov_b64 exec, 1")
    if STAMP == 1:
        a("buffer_store_dword v%d, off, s[60:63], s94" % vt)
    else:
        a("buffer_atomic_umax v%d, off, s[76:79], 0 offset:%d sc1" % (vt, idx * 4))
        if idx == 0:
            a("s_nop 4")
            a("v_sub_u32 v%d, 0, v%d" % (vt, vt))
            a("buffer_atomic_umax v%d, off, s[76:79], 0 offset:60 sc1" % vt)
    a("s_mov_b64 exec, s[96:97]")
    a.label(lab)


def kernel(a):
    name = NAME + "_kernel"
    a.raw(".globl %s" % name)
    a.raw(".p2align 8")
    a.raw(".type %s,@function" % name)
    a.label(name)
    a("s_cmp_ge_u32 s2, 256")
    a("s_cbranch_scc1 L_end")
    a("s_load_dwordx16 s[16:31], s[0:1], 0")
    a("s_load_dwordx8 s[32:39], s[0:1], 64")
    a("s_load_dwordx2 s[40:41], s[0:1], 96")
    a("s_and_b32 s3, s2, 7")
    a("s_lshr_b32 s4, s2, 3")

    VK, VV, MA, MB, X16, X32, LO, T0, T1 = 1, 2, 3, 4, 5, 6, 7, 8, 9
    QA, QB = 10, 14
    ZR = 18
    OL, OH = 28, 32
    M, MC, LS, T2 = 36, 37, 38, 39
    DB = 40
    SP = 56
    a("v_and_b32 v%d, 63, v0" % T0)
    a("v_lshrrev_b32 v%d, 6, v0" % T1)
    a("v_readfirstlane_b32 s5, v%d" % T1)
    a("s_lshr_b32 s84, s4, 4")
    a("s_and_b32 s85, s4, 15")
    a("s_bfe_u32 s86, s4, 0x20002")
    a("s_and_b32 s87, s4, 3")
    a("s_lshl_b32 s88, s3, 2")
    a("s_add_u32 s88, s88, s86")
    a("s_lshl_b32 s14, s3, 10")
    a("s_lshl_b32 s89, s85, 6")
    a("s_add_u32 s89, s89, s14")
    QW, QX, QACC = 56, 72, 76
    a("v_lshlrev_b32 v84, 6, v%d" % T1)
    a("v_lshrrev_b32 v85, 2, v%d" % T0)
    a("v_add_u32 v84, v84, v85")
    a("v_lshlrev_b32 v85, 13, v84")
    a("v_and_b32 v86, 3, v0")
    a("v_lshl_add_u32 v85, v86, 4, v85")
    a("v_lshlrev_b32 v84, 1, v84")
    a("v_lshrrev_b32 v87, 4, v0")
    a("v_lshlrev_b32 v87, 12, v87")
    a("v_and_b32 v%d, 15, v0" % T2)
    a("v_lshl_add_u32 v87, v%d, 4, v87" % T2)
    a("s_lshl_b32 s9, s88, 17")
    a("s_lshl_b32 s10, s87, 8")
    a("s_add_u32 s11, s9, s10")
    a("s_waitcnt lgkmcnt(0)")
    a("s_cmp_eq_u32 s84, 1")
    srd_sel(a, 64, 22, 32, 0x400000)
    a("s_cmp_eq_u32 s84, 1")
    srd_sel(a, 68, 16, 26, 1024)
    a("s_cmp_eq_u32 s84, 1")
    srd_sel(a, 72, 24, 34, 0x400000)
    for i in range(4):
        a("s_add_u32 s9, s89, %d" % (i * 131072))
        a("buffer_load_dwordx4 v[%d:%d], v85, s[64:67], s9 offen nt" % (QW + 4 * i, QW + 3 + 4 * i))
    for i in range(4):
        a("buffer_load_ushort v%d, v84, s[68:71], 0 offen offset:%d" % (QX + i, 32 * i))
    for i in range(4):
        a("buffer_load_dwordx4 v[%d:%d], v87, s[72:75], s11 offen offset:%d nt" % (WO + 4 * i, WO + 3 + 4 * i, 1024 * i))
    srd(a, 44, 18, 19, 0x4000000)
    srd(a, 48, 20, 21, 0x4000000)
    srd(a, 52, 28, 29, 0x4000000)
    srd(a, 56, 30, 31, 0x4000000)
    srd(a, 60, 40, 41, WS_SIZE)
    srd(a, 76, 38, 39, 256)
    srd(a, 80, 36, 37, 2048)
    a("v_lshlrev_b32 v%d, 4, v%d" % (VV, T0))
    a("v_bfe_u32 v%d, v%d, 2, 2" % (T1, T0))
    a("v_lshlrev_b32 v%d, 8, v%d" % (VK, T1))
    a("v_lshrrev_b32 v%d, 4, v%d" % (T2, T0))
    a("v_lshl_add_u32 v%d, v%d, 6, v%d" % (VK, T2, VK))
    a("v_and_b32 v%d, 3, v%d" % (M, T0))
    a("v_lshl_add_u32 v%d, v%d, 4, v%d" % (VK, M, VK))
    a("v_lshlrev_b32 v%d, 9, v%d" % (LO, T1))
    a("v_lshl_add_u32 v%d, v%d, 7, v%d" % (LO, T2, LO))
    a("v_lshl_add_u32 v%d, v%d, 2, v%d" % (LO, M, LO))
    a("s_lshl_b32 s6, s5, 11")
    a("v_add_u32 v%d, s6, v%d" % (LO, LO))
    a("s_lshl_b32 s6, s3, 23")
    a("s_lshl_b32 s7, s4, 18")
    a("s_lshl_b32 s8, s5, 15")
    a("s_add_u32 s7, s7, s8")
    a("s_add_u32 s12, s6, s7")
    a("s_lshl_b32 s7, s4, 15")
    a("s_lshl_b32 s8, s5, 12")
    a("s_add_u32 s7, s7, s8")
    a("s_add_u32 s13, s6, s7")
    a("s_add_u32 s13, s13, %d" % (28672 * 256))
    a("s_mov_b32 s15, 0x%x" % f2u(C_SCALE))

    loads = []
    for kq in range(32):
        loads.append((44, 12, VK, kq))
    for kq in range(32):
        loads.append((48, 12, VV, kq))
    for kq in range(4):
        loads.append((52, 13, VK, kq))
    for kq in range(4):
        loads.append((56, 13, VV, kq))
    NL = len(loads)
    state = {"issued": 0}

    def slot(i):
        return POOL0 + 4 * (i % NSLOT)

    def emit_load(i):
        sr, sb, vo, kq = loads[i]
        a("s_add_u32 s6, s%d, %d" % (sb, (kq >> 2) * 4096))
        r = slot(i)
        a("buffer_load_dwordx4 v[%d:%d], v%d, s[%d:%d], s6 offen offset:%d nt" % (r, r + 3, vo, sr, sr + 3, (kq & 3) * 1024))

    def issue():
        i = state["issued"]
        if i >= NL:
            return
        emit_load(i)
        state["issued"] += 1

    def wait_for(i):
        n = state["issued"] - (i + 1)
        a("s_waitcnt vmcnt(%d)" % n)

    stamp(a, 0)
    a("s_cmp_eq_u32 s5, 0")
    a("s_cbranch_scc1 L_w0_pre")
    for i in range(PACE):
        emit_load(i)
    a("s_waitcnt vmcnt(%d)" % (PACE + 4))
    a("s_branch L_q_calc")
    a.label("L_w0_pre")
    a("v_mov_b32 v88, 0")
    a("v_mov_b32 v89, 0")
    a("v_mov_b32 v90, 0")
    a("v_mov_b32 v91, 0")
    a("v_lshrrev_b32 v92, 5, v%d" % T0)
    a("v_lshlrev_b32 v92, 14, v92")
    a("v_and_b32 v93, 31, v%d" % T0)
    a("v_lshl_add_u32 v92, v93, 4, v92")
    a("s_lshl_b32 s6, s3, 16")
    a("s_lshl_b32 s7, s4, 9")
    a("s_add_u32 s6, s6, s7")
    a("s_add_u32 s6, s6, 0x%x" % WS_PO)
    for k in range(4):
        a("s_add_u32 s7, s6, 0x%x" % ((k >> 1) * 32 * 32 * 512 + (k & 1) * 2 * 16384))
        a("buffer_store_dwordx4 v[88:91], v92, s[60:63], s7 offen sc1")
    a("v_lshrrev_b32 v92, 2, v%d" % T0)
    a("v_lshlrev_b32 v92, 13, v92")
    a("v_and_b32 v93, 3, v%d" % T0)
    a("v_lshl_add_u32 v92, v93, 8, v92")
    a("s_lshl_b32 s6, s3, 10")
    a("s_lshl_b32 s7, s4, 3")
    a("s_add_u32 s6, s6, s7")
    a("s_add_u32 s6, s6, 0x%x" % WS_ML)
    a("s_mov_b64 exec, 0xff")
    a("buffer_store_dwordx2 v[88:89], v92, s[60:63], s6 offen sc1")
    a("s_mov_b32 exec_lo, -1")
    a("s_mov_b32 exec_hi, 0")
    a("s_lshl_b32 s6, s84, 2")
    a("s_add_u32 s6, s6, s87")
    a("s_lshl_b32 s6, s6, 5")
    a("s_add_u32 s6, s6, s88")
    a("s_lshl_b32 s6, s6, 9")
    a("s_add_u32 s6, s6, 0x%x" % WS_Y)
    a("buffer_store_dwordx4 v[88:91], v%d, s[60:63], s6 offen sc1" % VV)
    a("s_mov_b64 exec, -1")
    a("s_waitcnt vmcnt(10)")
    a.label("L_q_calc")
    for i in range(4):
        a("v_lshlrev_b32 v84, 16, v%d" % (QX + i))
        for r in range(4):
            a("v_lshlrev_b32 v85, 16, v%d" % (QW + 4 * i + r))
            a("v_and_b32 v86, 0xffff0000, v%d" % (QW + 4 * i + r))
            if i == 0:
                a("v_mul_f32 v%d, v84, v85" % (QACC + 2 * r))
                a("v_mul_f32 v%d, v84, v86" % (QACC + 1 + 2 * r))
            else:
                a("v_fmac_f32 v%d, v84, v85" % (QACC + 2 * r))
                a("v_fmac_f32 v%d, v84, v86" % (QACC + 1 + 2 * r))
    for rot in (4, 8):
        for j in range(8):
            a("v_add_f32_dpp v%d, v%d, v%d row_ror:%d row_mask:0xf bank_mask:0xf" % (QACC + j, QACC + j, QACC + j, rot))
    a("v_lshrrev_b32 v84, 4, v0")
    a("v_lshlrev_b32 v84, 7, v84")
    a("v_and_b32 v86, 3, v0")
    a("v_lshl_add_u32 v84, v86, 5, v84")
    a("ds_write_b128 v84, v[%d:%d] offset:%d" % (QACC, QACC + 3, L_QP))
    a("ds_write_b128 v84, v[%d:%d] offset:%d" % (QACC + 4, QACC + 7, L_QP + 16))
    a("v_mov_b32 v%d, 0" % MA)
    a("v_mov_b32 v%d, 0" % MB)
    a("v_mov_b32 v%d, 0xffff" % MC)
    a("v_mov_b32 v%d, 0xffff0000" % LS)
    a("v_cmp_eq_u32 vcc, 0, v%d" % M)
    a("v_cndmask_b32 v%d, v%d, v%d, vcc" % (MA, MA, MC))
    a("v_cmp_eq_u32 vcc, 1, v%d" % M)
    a("v_cndmask_b32 v%d, v%d, v%d, vcc" % (MA, MA, LS))
    a("v_cmp_eq_u32 vcc, 2, v%d" % M)
    a("v_cndmask_b32 v%d, v%d, v%d, vcc" % (MB, MB, MC))
    a("v_cmp_eq_u32 vcc, 3, v%d" % M)
    a("v_cndmask_b32 v%d, v%d, v%d, vcc" % (MB, MB, LS))
    a("v_xor_b32 v%d, 16, v%d" % (X16, T0))
    a("v_lshlrev_b32 v%d, 2, v%d" % (X16, X16))
    a("v_xor_b32 v%d, 32, v%d" % (X32, T0))
    a("v_lshlrev_b32 v%d, 2, v%d" % (X32, X32))
    for z in (0, 1, 4, 5, 8, 9):
        a("v_mov_b32 v%d, 0" % (ZR + z))
    a("s_waitcnt lgkmcnt(0)")
    a("s_barrier")
    a("s_cmp_eq_u32 s5, 0")
    a("s_cbranch_scc1 L_w0_q")
    for i in range(PACE, NSLOT):
        a("s_waitcnt vmcnt(%d)" % (PACE - 1))
        emit_load(i)
    a("s_branch L_q_wait")
    a.label("L_w0_q")
    stamp(a, 1)
    a("v_and_b32 v84, 15, v%d" % T0)
    a("v_lshlrev_b32 v85, 3, v84")
    for k in range(32):
        a("ds_read_b64 v[%d:%d], v85 offset:%d" % (88 + 2 * k, 89 + 2 * k, L_QP + 128 * k))
    a("s_waitcnt lgkmcnt(0)")
    for k in range(1, 32):
        a("v_add_f32 v88, v88, v%d" % (88 + 2 * k))
        a("v_add_f32 v89, v89, v%d" % (89 + 2 * k))
    a("v_cvt_pk_bf16_f32 v88, v88, v89")
    a("v_lshlrev_b32 v85, 2, v84")
    a("s_lshl_b32 s9, s84, 13")
    a("s_add_u32 s9, s9, s89")
    a("s_mov_b64 exec, 0xffff")
    a("buffer_store_dword v88, v85, s[60:63], s9 offen offset:%d sc1" % WS_Q)
    a("s_mov_b64 exec, -1")
    a("s_waitcnt vmcnt(0)")
    a("v_mov_b32 v88, 1")
    a("s_lshl_b32 s9, s3, 4")
    a("s_mov_b64 exec, 1")
    a("buffer_atomic_add v88, off, s[76:79], s9 offset:128 sc1")
    a("s_mov_b64 exec, -1")
    stamp(a, 2)
    a("v_and_b32 v84, 7, v%d" % T0)
    a("v_lshlrev_b32 v84, 4, v84")
    a("s_mov_b32 s90, 0")
    a.label("L_pollq")
    a("buffer_load_dword v88, v84, s[76:79], 0 offen offset:128 sc1")
    a("s_waitcnt vmcnt(0)")
    a("v_cmp_gt_u32 vcc, 32, v88")
    a("s_cmp_eq_u64 vcc, 0")
    a("s_cbranch_scc1 L_pollq_done")
    a("s_add_u32 s90, s90, 1")
    a("s_cmp_lt_u32 s90, %d" % SPIN_LIMIT)
    a("s_sleep 4")
    a("s_cbranch_scc1 L_pollq")
    a.label("L_pollq_done")
    stamp(a, 3)
    a("buffer_load_dwordx4 v[88:91], v%d, s[60:63], s14 offen offset:%d sc1" % (VK, WS_Q))
    a("s_add_u32 s6, s14, 8192")
    a("buffer_load_dwordx4 v[92:95], v%d, s[60:63], s6 offen offset:%d sc1" % (VK, WS_Q))
    a("s_waitcnt vmcnt(0)")
    a("ds_write_b128 v%d, v[88:91] offset:%d" % (VV, L_QO))
    a("ds_write_b128 v%d, v[92:95] offset:%d" % (VV, L_QO + 1024))
    a("s_waitcnt lgkmcnt(0)")
    stamp(a, 4)
    for i in range(NSLOT):
        emit_load(i)
    a.label("L_q_wait")
    state["issued"] = NSLOT
    a("s_barrier")
    a("ds_read_b128 v[%d:%d], v%d offset:%d" % (QA, QA + 3, VV, L_QO))
    a("ds_read_b128 v[%d:%d], v%d offset:%d" % (QB, QB + 3, VV, L_QO + 1024))
    a("s_waitcnt lgkmcnt(0)")

    def reduce_diag(kq):
        d = DB + 4 * (kq % 4)
        s = SP + kq
        a("v_mov_b32_dpp v%d, v%d quad_perm:[0,0,0,0] row_mask:0xf bank_mask:0xf" % (s, d))
        for i in (1, 2, 3):
            a("v_add_f32_dpp v%d, v%d, v%d quad_perm:[%d,%d,%d,%d] row_mask:0xf bank_mask:0xf" % (s, d + i, s, i, i, i, i))

    def branch(beta, li0, nkq, q):
        for kq in range(nkq):
            li = li0 + kq
            wait_for(li)
            d = DB + 4 * (kq % 4)
            r = slot(li)
            a("v_mfma_f32_16x16x32_bf16 v[%d:%d], v[%d:%d], v[%d:%d], 0" % (d, d + 3, r, r + 3, q, q + 3))
            issue()
            if kq >= 2:
                reduce_diag(kq - 2)
        reduce_diag(nkq - 2)
        reduce_diag(nkq - 1)
        a("v_max_f32 v%d, v%d, v%d" % (M, SP, SP + 1))
        for k in range(2, nkq, 2):
            a("v_max3_f32 v%d, v%d, v%d, v%d" % (M, M, SP + k, SP + k + 1))
        a("ds_bpermute_b32 v%d, v%d, v%d" % (T0, X16, M))
        a("s_waitcnt lgkmcnt(0)")
        a("v_max_f32 v%d, v%d, v%d" % (M, M, T0))
        a("ds_bpermute_b32 v%d, v%d, v%d" % (T0, X32, M))
        a("s_waitcnt lgkmcnt(0)")
        a("v_max_f32 v%d, v%d, v%d" % (M, M, T0))
        a("v_mul_f32 v%d, s15, v%d" % (MC, M))
        for k in range(nkq):
            a("v_fma_f32 v%d, v%d, s15, -v%d" % (SP + k, SP + k, MC))
        for k in range(nkq):
            a("v_exp_f32 v%d, v%d" % (SP + k, SP + k))
        a("v_add_f32 v%d, v%d, v%d" % (LS, SP, SP + 1))
        for k in range(2, nkq):
            a("v_add_f32 v%d, v%d, v%d" % (LS, LS, SP + k))

        def prep(kq):
            rr = ZR + 2 + 4 * (kq & 1)
            a("v_cvt_pk_bf16_f32 v%d, v%d, v%d" % (T1, SP + kq, SP + kq))
            a("v_and_b32 v%d, v%d, v%d" % (rr, T1, MA))
            a("v_and_b32 v%d, v%d, v%d" % (rr + 1, T1, MB))

        prep(0)
        for kq in range(nkq):
            li = li0 + nkq + kq
            if kq + 1 < nkq:
                prep(kq + 1)
            wait_for(li)
            r = slot(li)
            rr = ZR + 2 + 4 * (kq & 1)
            cl = "0" if kq == 0 else "v[%d:%d]" % (OL, OL + 3)
            ch = "0" if kq == 0 else "v[%d:%d]" % (OH, OH + 3)
            a("v_mfma_f32_16x16x32_bf16 v[%d:%d], v[%d:%d], v[%d:%d], %s" % (OL, OL + 3, r, r + 3, rr, rr + 3, cl))
            a("v_mfma_f32_16x16x32_bf16 v[%d:%d], v[%d:%d], v[%d:%d], %s" % (OH, OH + 3, r, r + 3, rr - 2, rr + 1, ch))
            issue()
        a("ds_bpermute_b32 v%d, v%d, v%d" % (T0, X16, LS))
        a("s_waitcnt lgkmcnt(0)")
        a("v_add_f32 v%d, v%d, v%d" % (LS, LS, T0))
        a("ds_bpermute_b32 v%d, v%d, v%d" % (T0, X32, LS))
        a("s_waitcnt lgkmcnt(0)")
        a("v_add_f32 v%d, v%d, v%d" % (MC, LS, T0))
        for i in range(4):
            a("ds_write_b32 v%d, v%d offset:%d" % (LO, OL + i, L_O + beta * 16384 + 32 * i))
            a("ds_write_b32 v%d, v%d offset:%d" % (LO, OH + i, L_O + beta * 16384 + 32 * i + 16))
        a("v_lshrrev_b32 v%d, 9, v%d" % (T0, LO))
        a("v_lshlrev_b32 v%d, 3, v%d" % (T0, T0))
        a("ds_write_b64 v%d, v[%d:%d] offset:%d" % (T0, M, MC, L_ML + beta * 256))

    branch(0, 0, 32, QA)
    branch(1, 64, 4, QB)
    a("s_waitcnt lgkmcnt(0)")
    stamp(a, 5)
    a("s_barrier")
    a("v_and_b32 v%d, 63, v0" % T0)
    a("s_lshr_b32 s6, s5, 2")
    a("s_and_b32 s7, s5, 3")
    a("s_lshl_b32 s8, s6, 14")
    a("s_lshl_b32 s9, s7, 9")
    a("s_add_u32 s8, s8, s9")
    a("v_lshlrev_b32 v%d, 3, v%d" % (T1, T0))
    a("v_add_u32 v%d, s8, v%d" % (T2, T1))
    a("s_lshl_b32 s8, s6, 8")
    a("s_lshl_b32 s9, s7, 3")
    a("s_add_u32 s8, s8, s9")
    a("v_mov_b32 v%d, s8" % T0)
    OB = 88
    MLB = 104
    for ws in range(8):
        a("ds_read_b64 v[%d:%d], v%d offset:%d" % (MLB + 2 * ws, MLB + 2 * ws + 1, T0, L_ML + ws * 32))
    for ws in range(8):
        a("ds_read_b64 v[%d:%d], v%d offset:%d" % (OB + 2 * ws, OB + 2 * ws + 1, T2, L_O + ws * 2048))
    a("s_waitcnt lgkmcnt(0)")
    a("v_max_f32 v%d, v%d, v%d" % (M, MLB, MLB + 2))
    for ws in range(2, 8, 2):
        a("v_max3_f32 v%d, v%d, v%d, v%d" % (M, M, MLB + 2 * ws, MLB + 2 * ws + 2))
    a("v_mul_f32 v%d, s15, v%d" % (MC, M))
    for ws in range(8):
        a("v_fma_f32 v%d, v%d, s15, -v%d" % (MLB + 2 * ws, MLB + 2 * ws, MC))
    for ws in range(8):
        a("v_exp_f32 v%d, v%d" % (MLB + 2 * ws, MLB + 2 * ws))
    a("v_mul_f32 v%d, v%d, v%d" % (MC, MLB, MLB + 1))
    a("v_mul_f32 v%d, v%d, v%d" % (OL, MLB, OB))
    a("v_mul_f32 v%d, v%d, v%d" % (OL + 1, MLB, OB + 1))
    for ws in range(1, 8):
        a("v_fmac_f32 v%d, v%d, v%d" % (MC, MLB + 2 * ws, MLB + 2 * ws + 1))
        a("v_fmac_f32 v%d, v%d, v%d" % (OL, MLB + 2 * ws, OB + 2 * ws))
        a("v_fmac_f32 v%d, v%d, v%d" % (OL + 1, MLB + 2 * ws, OB + 2 * ws + 1))
    for r in (OL, OL + 1, M, MC):
        a("v_add_f32 v%d, 0, v%d" % (r, r))
        a("v_xor_b32 v%d, 0x80000000, v%d" % (r, r))
    a("s_lshl_b32 s8, s6, 5")
    a("s_lshl_b32 s9, s3, 2")
    a("s_add_u32 s8, s8, s9")
    a("s_add_u32 s8, s8, s7")
    a("s_lshl_b32 s8, s8, 5")
    a("s_add_u32 s8, s8, s4")
    a("s_lshl_b32 s9, s8, 9")
    a("s_add_u32 s9, s9, 0x%x" % WS_PO)
    a("buffer_store_dwordx2 v[%d:%d], v%d, s[60:63], s9 offen sc1" % (OL, OL + 1, T1))
    a("s_lshl_b32 s9, s8, 3")
    a("s_add_u32 s9, s9, 0x%x" % WS_ML)
    a("s_mov_b64 exec, 1")
    a("buffer_store_dwordx2 v[%d:%d], off, s[60:63], s9 sc1" % (M, MC))
    a("s_mov_b64 exec, -1")
    stamp(a, 6)

    a("v_lshrrev_b32 v1, 4, v0")
    a("v_and_b32 v2, 15, v0")
    a("s_lshl_b32 s11, s84, 5")
    a("s_add_u32 s11, s11, s88")
    a("v_and_b32 v4, 31, v0")
    a("v_lshlrev_b32 v5, 3, v4")
    a("s_lshl_b32 s12, s11, 8")
    a("s_add_u32 s12, s12, 0x%x" % WS_ML)
    a("v_lshrrev_b32 v6, 5, v0")
    a("v_lshlrev_b32 v7, 10, v6")
    a("v_lshl_add_u32 v7, v4, 4, v7")
    a("s_lshl_b32 s13, s11, 14")
    a("s_add_u32 s13, s13, 0x%x" % WS_PO)
    a("v_and_b32 v10, 63, v0")
    a("v_xor_b32 v10, 16, v10")
    a("v_lshlrev_b32 v10, 2, v10")
    a("s_mov_b32 s90, 0")
    a.label("L_poll1")
    a("buffer_load_dwordx2 v[8:9], v5, s[60:63], s12 offen sc1")
    a("s_waitcnt vmcnt(0)")
    a("v_min_u32 v20, v8, v9")
    a("v_cmp_eq_u32 vcc, 0, v20")
    a("s_cmp_eq_u64 vcc, 0")
    a("s_cbranch_scc1 L_poll1_done")
    a("s_add_u32 s90, s90, 1")
    a("s_cmp_lt_u32 s90, %d" % SPIN_LIMIT)
    a("s_sleep 1")
    a("s_cbranch_scc1 L_poll1")
    a.label("L_poll1_done")
    a("s_mov_b32 s90, 0")
    a.label("L_poll2")
    a("buffer_load_dwordx4 v[12:15], v7, s[60:63], s13 offen sc1")
    a("buffer_load_dwordx4 v[16:19], v7, s[60:63], s13 offen offset:512 sc1")
    a("s_waitcnt vmcnt(0)")
    a("v_min3_u32 v20, v12, v13, v14")
    a("v_min3_u32 v20, v20, v15, v16")
    a("v_min3_u32 v20, v20, v17, v18")
    a("v_min_u32 v20, v20, v19")
    a("v_cmp_eq_u32 vcc, 0, v20")
    a("s_cmp_eq_u64 vcc, 0")
    a("s_cbranch_scc1 L_poll2_done")
    a("s_add_u32 s90, s90, 1")
    a("s_cmp_lt_u32 s90, %d" % SPIN_LIMIT)
    a("s_cbranch_scc1 L_poll2")
    a.label("L_poll2_done")
    stamp(a, 7)
    a("v_xor_b32 v8, 0x80000000, v8")
    a("v_xor_b32 v9, 0x80000000, v9")
    a("v_mov_b32 v36, v8")
    for rot in (1, 2, 4, 8):
        a("v_max_f32_dpp v36, v36, v36 row_ror:%d row_mask:0xf bank_mask:0xf" % rot)
    a("ds_bpermute_b32 v37, v10, v36")
    a("s_waitcnt lgkmcnt(0)")
    a("v_max_f32 v36, v36, v37")
    a("v_mul_f32 v36, s15, v36")
    a("v_fma_f32 v38, v8, s15, -v36")
    a("v_exp_f32 v38, v38")
    a("v_mul_f32 v39, v38, v9")
    for rot in (1, 2, 4, 8):
        a("v_add_f32_dpp v39, v39, v39 row_ror:%d row_mask:0xf bank_mask:0xf" % rot)
    a("ds_bpermute_b32 v37, v10, v39")
    a("v_lshlrev_b32 v11, 3, v6")
    a("v_add_u32 v40, 4, v11")
    a("ds_bpermute_b32 v41, v11, v38")
    a("ds_bpermute_b32 v42, v40, v38")
    a("s_waitcnt lgkmcnt(0)")
    a("v_add_f32 v39, v39, v37")
    a("v_rcp_f32 v39, v39")
    for k in range(4):
        a("v_mul_f32 v%d, v41, -v%d" % (12 + k, 12 + k))
        a("v_fma_f32 v%d, v42, -v%d, v%d" % (12 + k, 16 + k, 12 + k))
    a("v_lshlrev_b32 v11, 9, v6")
    a("v_lshl_add_u32 v11, v4, 4, v11")
    a("ds_write_b128 v11, v[12:15] offset:%d" % L_C1)
    a("s_waitcnt lgkmcnt(0)")
    a("s_barrier")
    a("v_and_b32 v11, 127, v0")
    a("v_lshlrev_b32 v11, 2, v11")
    for k in range(16):
        a("ds_read_b32 v%d, v11 offset:%d" % (44 + k, L_C1 + 512 * k))
    a("s_waitcnt lgkmcnt(0)")
    for k in range(1, 16):
        a("v_add_f32 v44, v44, v%d" % (44 + k))
    a("v_mul_f32 v44, v44, v39")
    a("v_cvt_pk_bf16_f32 v44, v44, v44")
    a("v_lshlrev_b32 v44, 16, v44")
    a("ds_write_b32 v11, v44 offset:%d" % L_OV)
    a("s_waitcnt lgkmcnt(0)")
    a("s_barrier")
    a("v_lshlrev_b32 v12, 4, v1")
    a("ds_read_b128 v[44:47], v12 offset:%d" % L_OV)
    a("s_waitcnt lgkmcnt(0)")
    for i in range(4):
        for r in range(4):
            a("v_lshlrev_b32 v37, 16, v%d" % (WO + 4 * i + r))
            a("v_and_b32 v38, 0xffff0000, v%d" % (WO + 4 * i + r))
            if i == 0:
                a("v_mul_f32 v%d, v44, v37" % (48 + 2 * r))
                a("v_mul_f32 v%d, v44, v38" % (49 + 2 * r))
            else:
                a("v_fmac_f32 v%d, v%d, v37" % (48 + 2 * r, 44 + i))
                a("v_fmac_f32 v%d, v%d, v38" % (49 + 2 * r, 44 + i))
    a("v_lshlrev_b32 v12, 9, v1")
    a("v_lshl_add_u32 v12, v2, 5, v12")
    a("ds_write_b128 v12, v[48:51] offset:%d" % L_C2)
    a("ds_write_b128 v12, v[52:55] offset:%d" % (L_C2 + 16))
    a("s_waitcnt lgkmcnt(0)")
    a("s_barrier")
    a("s_cmp_ge_u32 s5, 2")
    a("s_cbranch_scc1 L_after_y")
    for k in range(32):
        a("ds_read_b32 v%d, v11 offset:%d" % (56 + k, L_C2 + 512 * k))
    a("s_waitcnt lgkmcnt(0)")
    for k in range(1, 32):
        a("v_add_f32 v56, v56, v%d" % (56 + k))
    a("v_add_f32 v56, 0, v56")
    a("v_xor_b32 v56, 0x80000000, v56")
    a("s_lshl_b32 s9, s84, 2")
    a("s_add_u32 s9, s9, s87")
    a("s_lshl_b32 s9, s9, 5")
    a("s_add_u32 s9, s9, s88")
    a("s_lshl_b32 s9, s9, 9")
    a("s_add_u32 s9, s9, 0x%x" % WS_Y)
    a("buffer_store_dword v56, v11, s[60:63], s9 offen sc1")
    a.label("L_after_y")
    stamp(a, 8)
    a("s_lshl_b32 s9, s84, 2")
    a("s_add_u32 s9, s9, s87")
    a("s_cmp_lg_u32 s86, 0")
    a("s_cbranch_scc1 L_end")
    a("s_cmp_lg_u32 s9, s3")
    a("s_cbranch_scc1 L_end")
    a("s_lshl_b32 s10, s9, 14")
    a("s_add_u32 s10, s10, 0x%x" % WS_Y)
    a("s_mov_b32 s90, 0")
    a.label("L_poll3")
    a("buffer_load_dwordx4 v[12:15], v7, s[60:63], s10 offen sc1")
    a("buffer_load_dwordx4 v[16:19], v7, s[60:63], s10 offen offset:512 sc1")
    a("s_waitcnt vmcnt(0)")
    a("v_min3_u32 v20, v12, v13, v14")
    a("v_min3_u32 v20, v20, v15, v16")
    a("v_min3_u32 v20, v20, v17, v18")
    a("v_min_u32 v20, v20, v19")
    a("v_cmp_eq_u32 vcc, 0, v20")
    a("s_cmp_eq_u64 vcc, 0")
    a("s_cbranch_scc1 L_poll3_done")
    a("s_add_u32 s90, s90, 1")
    a("s_cmp_lt_u32 s90, %d" % SPIN_LIMIT)
    a("s_cbranch_scc1 L_poll3")
    a.label("L_poll3_done")
    for k in range(4):
        a("v_sub_f32 v%d, -v%d, v%d" % (12 + k, 12 + k, 16 + k))
    a("v_lshlrev_b32 v12, 9, v6") if False else None
    a("v_lshlrev_b32 v21, 9, v6")
    a("v_lshl_add_u32 v21, v4, 4, v21")
    a("ds_write_b128 v21, v[12:15] offset:%d" % L_C1)
    a("s_waitcnt lgkmcnt(0)")
    a("s_barrier")
    a("s_cmp_ge_u32 s5, 2")
    a("s_cbranch_scc1 L_end")
    for k in range(16):
        a("ds_read_b32 v%d, v11 offset:%d" % (44 + k, L_C1 + 512 * k))
    a("s_waitcnt lgkmcnt(0)")
    for k in range(1, 16):
        a("v_add_f32 v44, v44, v%d" % (44 + k))
    a("v_cvt_pk_bf16_f32 v44, v44, v44")
    a("v_lshrrev_b32 v11, 1, v11")
    a("s_lshl_b32 s9, s9, 8")
    a("buffer_store_short v44, v11, s[80:83], s9 offen")
    stamp(a, 9)
    a.label("L_end")
    a("s_endpgm")
    return name, 256


def main():
    a = Asm()
    a.raw('.amdgcn_target "amdgcn-amd-amdhsa--gfx950"')
    a.raw(".text")
    n, v = kernel(a)
    body = a.finalize()
    launch = "; @launch grid=(256,1,1) block=(512,1,1) lds=%d\n" % LDS_BYTES
    out = HEADER + launch + body + '.section .rodata,"a"\n.p2align 6\n' + descriptor(n, v)
    path = sys.argv[1] if len(sys.argv) > 1 else "cdna_kernels/%s.s" % NAME
    open(path, "w").write(out)


if __name__ == "__main__":
    main()
```

```python
import math
import os
import struct
import sys

sys.path.insert(0, "gen")
from asmlib import Asm

NAME = "concat_heads__gqa_block_cached__sliding_block_cached__decode"
HEADER = open("cdna_kernels/%s.s.ref" % NAME).read().split("; Override launch")[0]

WS_ML = 0x8000
WS_Y = 0x40000
WS_QP = 0x80000
WS_PO = 0x100000
WS_SIZE = 0x300000

C_SCALE = (128 ** -0.5) * math.log2(math.e)
SPIN_LIMIT = 20000

NLDS = int(os.environ.get("NLDS", "0"))
L_ML = 0
L_O = 1024
L_C2 = 33792
L_C1 = 50176
LDS_BYTES = 58368

POOL0 = 88
NSLOT = int(os.environ.get("NSLOT", "37"))
WO = 240
VZ, VZO = 236, 237
STAMP = int(os.environ.get("STAMP", "0"))
PACE = int(os.environ.get("PACE", "4"))
NPF = int(os.environ.get("NPF", "0"))
LAST = int(os.environ.get("LAST", "1"))
WOWARM = int(os.environ.get("WOWARM", "0"))


def f2u(x):
    return struct.unpack("<I", struct.pack("<f", x))[0]


def srd(a, d, lo, hi, nbytes):
    a("s_mov_b32 s%d, s%d" % (d, lo))
    a("s_and_b32 s%d, s%d, 0xffff" % (d + 1, hi))
    a("s_mov_b32 s%d, 0x%x" % (d + 2, nbytes))
    a("s_mov_b32 s%d, 0x00020000" % (d + 3))


def srd_sel(a, d, loA, loB, nbytes):
    a("s_cselect_b32 s%d, s%d, s%d" % (d, loB, loA))
    a("s_cselect_b32 s%d, s%d, s%d" % (d + 1, loB + 1, loA + 1))
    a("s_and_b32 s%d, s%d, 0xffff" % (d + 1, d + 1))
    a("s_mov_b32 s%d, 0x%x" % (d + 2, nbytes))
    a("s_mov_b32 s%d, 0x00020000" % (d + 3))


def descriptor(name, vgpr, sgpr=100):
    return """.amdhsa_kernel %s
  .amdhsa_next_free_vgpr %d
  .amdhsa_next_free_sgpr %d
  .amdhsa_accum_offset %d
  .amdhsa_group_segment_fixed_size 0
  .amdhsa_kernarg_size 104
  .amdhsa_user_sgpr_count 2
  .amdhsa_user_sgpr_kernarg_segment_ptr 1
  .amdhsa_system_sgpr_workgroup_id_x 1
.end_amdhsa_kernel
""" % (name, vgpr, sgpr, (vgpr + 3) // 4 * 4)


def stamp(a, idx, wave=0, vt=238):
    if not STAMP:
        return
    lab = "L_st%d" % idx
    a("s_cmp_lg_u32 s5, %d" % wave)
    a("s_cbranch_scc1 %s" % lab)
    a("s_memrealtime s[92:93]")
    a("s_waitcnt lgkmcnt(0)")
    a("v_mov_b32 v%d, s92" % vt)
    a("s_lshl_b32 s94, s2, 6")
    a("s_add_u32 s94, s94, 0x%x" % (0x200000 + idx * 4))
    a("s_mov_b64 s[96:97], exec")
    a("s_mov_b64 exec, 1")
    if STAMP == 1:
        a("buffer_store_dword v%d, off, s[60:63], s94" % vt)
    else:
        a("buffer_atomic_umax v%d, off, s[76:79], 0 offset:%d sc1" % (vt, idx * 4))
        if idx == 0:
            a("s_nop 4")
            a("v_sub_u32 v%d, 0, v%d" % (vt, vt))
            a("buffer_atomic_umax v%d, off, s[76:79], 0 offset:60 sc1" % vt)
    a("s_mov_b64 exec, s[96:97]")
    a.label(lab)


def k_qproj(a):
    name = "qproj_kernel"
    a.raw(".globl %s" % name)
    a.raw(".p2align 8")
    a.raw(".type %s,@function" % name)
    a.label(name)
    a("s_cmp_ge_u32 s2, 256")
    a("s_cbranch_scc1 L_end_q")
    a("s_load_dwordx16 s[16:31], s[0:1], 0")
    a("s_load_dwordx8 s[32:39], s[0:1], 64")
    a("s_load_dwordx2 s[40:41], s[0:1], 96")
    a("s_and_b32 s3, s2, 7")
    a("s_lshr_b32 s4, s2, 3")
    T0, T1, T2 = 8, 9, 39
    QW, QX, QACC = 12, 28, 32
    a("v_and_b32 v%d, 63, v0" % T0)
    a("v_lshrrev_b32 v%d, 6, v0" % T1)
    a("v_readfirstlane_b32 s5, v%d" % T1)
    a("s_lshr_b32 s84, s4, 4")
    a("s_bfe_u32 s86, s4, 0x20002")
    a("s_and_b32 s87, s4, 3")
    a("s_lshl_b32 s88, s3, 2")
    a("s_add_u32 s88, s88, s86")
    a("s_lshl_b32 s14, s3, 10")
    a("v_lshrrev_b32 v%d, 4, v%d" % (T2, T0))
    a("v_lshl_add_u32 v4, v%d, 4, v%d" % (T1, T2))
    a("v_lshlrev_b32 v5, 13, v4")
    a("v_and_b32 v6, 15, v0")
    a("v_lshl_add_u32 v5, v6, 4, v5")
    a("v_lshlrev_b32 v4, 1, v4")
    a("s_lshl_b32 s89, s86, 20")
    a("s_lshl_b32 s9, s87, 8")
    a("s_add_u32 s89, s89, s9")
    a("s_add_u32 s89, s89, s14")
    a("s_lshl_b32 s85, s86, 8")
    a("s_waitcnt lgkmcnt(0)")
    a("s_cmp_eq_u32 s84, 1")
    srd_sel(a, 64, 22, 32, 0x400000)
    a("s_cmp_eq_u32 s84, 1")
    srd_sel(a, 68, 16, 26, 1024)
    for i in range(4):
        a("s_add_u32 s9, s89, %d" % (i * 32768))
        a("buffer_load_dwordx4 v[%d:%d], v5, s[64:67], s9 offen nt" % (QW + 4 * i, QW + 3 + 4 * i))
    for i in range(4):
        a("buffer_load_ushort v%d, v4, s[68:71], s85 offen offset:%d" % (QX + i, 8 * i))
    srd(a, 60, 40, 41, WS_SIZE)
    if NPF:
        srd(a, 44, 18, 19, 0x4000000)
        a("s_lshl_b32 s6, s3, 23")
        a("s_lshl_b32 s7, s4, 18")
        a("s_lshl_b32 s8, s5, 15")
        a("s_add_u32 s7, s7, s8")
        a("s_add_u32 s12, s6, s7")
        a("v_lshlrev_b32 v42, 4, v%d" % T0)
        for i in range(NPF):
            a("s_add_u32 s6, s12, %d" % ((i >> 2) * 4096))
            a("buffer_load_dwordx4 v[%d:%d], v42, s[44:47], s6 offen offset:%d" % (80 + 4 * (i & 3), 83 + 4 * (i & 3), (i & 3) * 1024))
    a("s_waitcnt vmcnt(%d)" % NPF)
    for i in range(4):
        a("v_lshlrev_b32 v44, 16, v%d" % (QX + i))
        for r in range(4):
            a("v_lshlrev_b32 v45, 16, v%d" % (QW + 4 * i + r))
            a("v_and_b32 v46, 0xffff0000, v%d" % (QW + 4 * i + r))
            if i == 0:
                a("v_mul_f32 v%d, v44, v45" % (QACC + 2 * r))
                a("v_mul_f32 v%d, v44, v46" % (QACC + 1 + 2 * r))
            else:
                a("v_fmac_f32 v%d, v44, v45" % (QACC + 2 * r))
                a("v_fmac_f32 v%d, v44, v46" % (QACC + 1 + 2 * r))
    a("v_lshrrev_b32 v44, 4, v0")
    a("v_lshlrev_b32 v44, 9, v44")
    a("v_lshl_add_u32 v44, v6, 5, v44")
    a("ds_write_b128 v44, v[%d:%d]" % (QACC, QACC + 3))
    a("ds_write_b128 v44, v[%d:%d] offset:16" % (QACC + 4, QACC + 7))
    a("s_waitcnt lgkmcnt(0)")
    a("s_barrier")
    a("s_cmp_ge_u32 s5, 2")
    a("s_cbranch_scc1 L_end_q")
    a("v_lshlrev_b32 v45, 2, v0")
    for k in range(32):
        a("ds_read_b32 v%d, v45 offset:%d" % (48 + k, 512 * k))
    a("s_waitcnt lgkmcnt(0)")
    for k in range(0, 32, 2):
        a("v_add_f32 v%d, v%d, v%d" % (48 + k, 48 + k, 49 + k))
    for k in range(0, 32, 4):
        a("v_add_f32 v%d, v%d, v%d" % (48 + k, 48 + k, 50 + k))
    for k in range(0, 32, 8):
        a("v_add_f32 v%d, v%d, v%d" % (48 + k, 48 + k, 52 + k))
    a("v_add_f32 v48, v48, v56")
    a("v_add_f32 v64, v64, v72")
    a("v_add_f32 v48, v48, v64")
    a("s_lshl_b32 s9, s84, 3")
    a("s_add_u32 s9, s9, s3")
    a("s_lshl_b32 s9, s9, 2")
    a("s_add_u32 s9, s9, s87")
    a("s_lshl_b32 s9, s9, 2")
    a("s_add_u32 s9, s9, s86")
    a("s_lshl_b32 s9, s9, 9")
    a("s_add_u32 s9, s9, 0x%x" % WS_QP)
    a("buffer_store_dword v48, v45, s[60:63], s9 offen")
    a.label("L_end_q")
    a("s_endpgm")
    return name, 96


def kernel(a):
    name = "attn_kernel"
    a.raw(".globl %s" % name)
    a.raw(".p2align 8")
    a.raw(".type %s,@function" % name)
    a.label(name)
    a("s_cmp_ge_u32 s2, 256")
    a("s_cbranch_scc1 L_end")
    a("s_load_dwordx16 s[16:31], s[0:1], 0")
    a("s_load_dwordx8 s[32:39], s[0:1], 64")
    a("s_load_dwordx2 s[40:41], s[0:1], 96")
    a("s_and_b32 s3, s2, 7")
    a("s_lshr_b32 s4, s2, 3")

    VK, VV, MA, MB, X16, X32, LO, T0, T1 = 1, 2, 3, 4, 5, 6, 7, 8, 9
    QA, QB = 10, 14
    ZR = 18
    OL, OH = 28, 32
    M, MC, LS, T2 = 36, 37, 38, 39
    DB = 40
    SP = 56
    a("v_and_b32 v%d, 63, v0" % T0)
    a("v_lshrrev_b32 v%d, 6, v0" % T1)
    a("v_readfirstlane_b32 s5, v%d" % T1)
    a("s_lshr_b32 s84, s4, 4")
    a("s_bfe_u32 s86, s4, 0x20002")
    a("s_and_b32 s87, s4, 3")
    a("s_lshl_b32 s88, s3, 2")
    a("s_add_u32 s88, s88, s86")
    a("v_lshrrev_b32 v%d, 4, v%d" % (T2, T0))
    a("v_lshlrev_b32 v%d, 4, v%d" % (VV, T0))
    a("v_bfe_u32 v%d, v%d, 2, 2" % (T1, T0))
    a("v_lshlrev_b32 v%d, 8, v%d" % (VK, T1))
    a("v_lshl_add_u32 v%d, v%d, 6, v%d" % (VK, T2, VK))
    a("v_and_b32 v%d, 3, v%d" % (M, T0))
    a("v_lshl_add_u32 v%d, v%d, 4, v%d" % (VK, M, VK))
    a("v_lshlrev_b32 v84, 11, v%d" % T1)
    a("v_lshl_add_u32 v84, v%d, 7, v84" % T2)
    a("v_lshl_add_u32 v84, v%d, 5, v84" % M)
    a("s_lshl_b32 s6, s3, 23")
    a("s_lshl_b32 s7, s4, 18")
    a("s_lshl_b32 s8, s5, 15")
    a("s_add_u32 s7, s7, s8")
    a("s_add_u32 s12, s6, s7")
    a("s_lshl_b32 s7, s4, 15")
    a("s_lshl_b32 s8, s5, 12")
    a("s_add_u32 s7, s7, s8")
    a("s_add_u32 s13, s6, s7")
    a("s_add_u32 s13, s13, %d" % (28672 * 256))
    a("s_waitcnt lgkmcnt(0)")
    srd(a, 60, 40, 41, WS_SIZE)
    srd(a, 44, 18, 19, 0x4000000)
    QT = POOL0 + 4 * (NSLOT - 16)
    for b in range(2):
        a("s_add_u32 s6, s3, %d" % (8 * b))
        a("s_lshl_b32 s6, s6, 13")
        a("s_add_u32 s6, s6, 0x%x" % WS_QP)
        for rb in range(4):
            r = QT + 32 * b + 8 * rb
            a("buffer_load_dwordx4 v[%d:%d], v84, s[60:63], s6 offen offset:%d" % (r, r + 3, 512 * rb))
            a("buffer_load_dwordx4 v[%d:%d], v84, s[60:63], s6 offen offset:%d" % (r + 4, r + 7, 512 * rb + 16))

    loads = []
    for kq in range(32):
        loads.append((44, 12, VK, kq))
    for kq in range(32):
        loads.append((48, 12, VV, kq))
    for kq in range(4):
        loads.append((52, 13, VK, kq))
    for kq in range(4):
        loads.append((56, 13, VV, kq))
    NL = len(loads)
    state = {"issued": 0}

    def slot(i):
        return POOL0 + 4 * (i % NSLOT)

    def issue():
        i = state["issued"]
        if i >= NL:
            return
        sr, sb, vo, kq = loads[i]
        a("s_add_u32 s6, s%d, %d" % (sb, (kq >> 2) * 4096))
        r = slot(i)
        a("buffer_load_dwordx4 v[%d:%d], v%d, s[%d:%d], s6 offen offset:%d nt" % (r, r + 3, vo, sr, sr + 3, (kq & 3) * 1024))
        state["issued"] += 1

    def wait_for(i):
        n = state["issued"] - (i + 1)
        a("s_waitcnt vmcnt(%d)" % n)

    for _ in range(NSLOT - 16):
        issue()
    srd(a, 48, 20, 21, 0x4000000)
    srd(a, 52, 28, 29, 0x4000000)
    srd(a, 56, 30, 31, 0x4000000)
    srd(a, 76, 38, 39, 256)
    srd(a, 80, 36, 37, 2048)
    a("s_cmp_eq_u32 s84, 1")
    srd_sel(a, 72, 24, 34, 0x400000)
    stamp(a, 0)
    a("v_lshlrev_b32 v%d, 9, v%d" % (LO, T1))
    a("v_lshl_add_u32 v%d, v%d, 7, v%d" % (LO, T2, LO))
    a("v_lshl_add_u32 v%d, v%d, 2, v%d" % (LO, M, LO))
    a("s_lshl_b32 s6, s5, 12")
    a("s_add_u32 s6, s6, %d" % L_O)
    a("v_add_u32 v%d, s6, v%d" % (LO, LO))
    a("s_mov_b32 s15, 0x%x" % f2u(C_SCALE))
    a("v_mov_b32 v%d, 0" % MA)
    a("v_mov_b32 v%d, 0" % MB)
    a("v_mov_b32 v%d, 0xffff" % MC)
    a("v_mov_b32 v%d, 0xffff0000" % LS)
    a("v_cmp_eq_u32 vcc, 0, v%d" % M)
    a("v_cndmask_b32 v%d, v%d, v%d, vcc" % (MA, MA, MC))
    a("v_cmp_eq_u32 vcc, 1, v%d" % M)
    a("v_cndmask_b32 v%d, v%d, v%d, vcc" % (MA, MA, LS))
    a("v_cmp_eq_u32 vcc, 2, v%d" % M)
    a("v_cndmask_b32 v%d, v%d, v%d, vcc" % (MB, MB, MC))
    a("v_cmp_eq_u32 vcc, 3, v%d" % M)
    a("v_cndmask_b32 v%d, v%d, v%d, vcc" % (MB, MB, LS))
    a("v_xor_b32 v%d, 16, v%d" % (X16, T0))
    a("v_lshlrev_b32 v%d, 2, v%d" % (X16, X16))
    a("v_xor_b32 v%d, 32, v%d" % (X32, T0))
    a("v_lshlrev_b32 v%d, 2, v%d" % (X32, X32))
    for z in (0, 1, 4, 5, 8, 9):
        a("v_mov_b32 v%d, 0" % (ZR + z))
    a("v_lshrrev_b32 v87, 4, v0")
    a("v_lshlrev_b32 v87, 12, v87")
    a("v_and_b32 v86, 15, v0")
    a("v_lshl_add_u32 v87, v86, 4, v87")
    a("s_lshl_b32 s9, s88, 17")
    a("s_lshl_b32 s10, s87, 8")
    a("s_add_u32 s11, s9, s10")
    a("s_waitcnt vmcnt(%d)" % (NSLOT - 16))
    for b in range(2):
        r = QT + 32 * b
        for j in range(8):
            a("v_add_f32 v%d, v%d, v%d" % (r + j, r + j, r + 8 + j))
            a("v_add_f32 v%d, v%d, v%d" % (r + 16 + j, r + 16 + j, r + 24 + j))
        for j in range(8):
            a("v_add_f32 v%d, v%d, v%d" % (r + j, r + j, r + 16 + j))
        for j in range(4):
            a("v_cvt_pk_bf16_f32 v%d, v%d, v%d" % (QA + 4 * b + j, r + 2 * j, r + 2 * j + 1))
    for _ in range(16):
        issue()
    stamp(a, 1)

    def reduce_diag(kq):
        d = DB + 4 * (kq % 4)
        s = SP + kq
        a("v_mov_b32_dpp v%d, v%d quad_perm:[0,0,0,0] row_mask:0xf bank_mask:0xf" % (s, d))
        for i in (1, 2, 3):
            a("v_add_f32_dpp v%d, v%d, v%d quad_perm:[%d,%d,%d,%d] row_mask:0xf bank_mask:0xf" % (s, d + i, s, i, i, i, i))

    wo_done = {"x": False}

    def branch(beta, li0, nkq, q):
        for kq in range(nkq):
            li = li0 + kq
            wait_for(li)
            d = DB + 4 * (kq % 4)
            r = slot(li)
            a("v_mfma_f32_16x16x32_bf16 v[%d:%d], v[%d:%d], v[%d:%d], 0" % (d, d + 3, r, r + 3, q, q + 3))
            issue()
            if kq >= 2:
                reduce_diag(kq - 2)
        reduce_diag(nkq - 2)
        reduce_diag(nkq - 1)
        a("v_max_f32 v%d, v%d, v%d" % (M, SP, SP + 1))
        for k in range(2, nkq, 2):
            a("v_max3_f32 v%d, v%d, v%d, v%d" % (M, M, SP + k, SP + k + 1))
        a("ds_bpermute_b32 v%d, v%d, v%d" % (T0, X16, M))
        a("s_waitcnt lgkmcnt(0)")
        a("v_max_f32 v%d, v%d, v%d" % (M, M, T0))
        a("ds_bpermute_b32 v%d, v%d, v%d" % (T0, X32, M))
        a("s_waitcnt lgkmcnt(0)")
        a("v_max_f32 v%d, v%d, v%d" % (M, M, T0))
        a("v_mul_f32 v%d, s15, v%d" % (MC, M))
        for k in range(nkq):
            a("v_fma_f32 v%d, v%d, s15, -v%d" % (SP + k, SP + k, MC))
        for k in range(nkq):
            a("v_exp_f32 v%d, v%d" % (SP + k, SP + k))
        a("v_add_f32 v%d, v%d, v%d" % (LS, SP, SP + 1))
        for k in range(2, nkq):
            a("v_add_f32 v%d, v%d, v%d" % (LS, LS, SP + k))

        def prep(kq):
            rr = ZR + 2 + 4 * (kq & 1)
            a("v_cvt_pk_bf16_f32 v%d, v%d, v%d" % (T1, SP + kq, SP + kq))
            a("v_and_b32 v%d, v%d, v%d" % (rr, T1, MA))
            a("v_and_b32 v%d, v%d, v%d" % (rr + 1, T1, MB))

        prep(0)
        for kq in range(nkq):
            li = li0 + nkq + kq
            if kq + 1 < nkq:
                prep(kq + 1)
            wait_for(li)
            r = slot(li)
            rr = ZR + 2 + 4 * (kq & 1)
            cl = "0" if kq == 0 else "v[%d:%d]" % (OL, OL + 3)
            ch = "0" if kq == 0 else "v[%d:%d]" % (OH, OH + 3)
            a("v_mfma_f32_16x16x32_bf16 v[%d:%d], v[%d:%d], v[%d:%d], %s" % (OL, OL + 3, r, r + 3, rr, rr + 3, cl))
            a("v_mfma_f32_16x16x32_bf16 v[%d:%d], v[%d:%d], v[%d:%d], %s" % (OH, OH + 3, r, r + 3, rr - 2, rr + 1, ch))
            issue()
        a("ds_bpermute_b32 v%d, v%d, v%d" % (T0, X16, LS))
        a("s_waitcnt lgkmcnt(0)")
        a("v_add_f32 v%d, v%d, v%d" % (LS, LS, T0))
        a("ds_bpermute_b32 v%d, v%d, v%d" % (T0, X32, LS))
        a("s_waitcnt lgkmcnt(0)")
        a("v_add_f32 v%d, v%d, v%d" % (MC, LS, T0))
        for i in range(4):
            a("ds_write_b32 v%d, v%d offset:%d" % (LO, OL + i, beta * 2048 + 32 * i))
            a("ds_write_b32 v%d, v%d offset:%d" % (LO, OH + i, beta * 2048 + 32 * i + 16))
        a("v_bfe_u32 v%d, v0, 2, 2" % T0)
        a("v_lshlrev_b32 v%d, 3, v%d" % (T0, T0))
        a("s_lshl_b32 s6, s5, 5")
        a("v_add_u32 v%d, s6, v%d" % (T0, T0))
        a("ds_write_b64 v%d, v[%d:%d] offset:%d" % (T0, M, MC, L_ML + beta * 256))

    for i in range(4 if WOWARM else 0):
        a("buffer_load_dwordx4 v[%d:%d], v87, s[72:75], s11 offen offset:%d" % (WO + 4 * i, WO + 3 + 4 * i, 1024 * i))
    base_extra = {"n": 4, "at": state["issued"] if WOWARM else 0}
    _wf = wait_for

    def wait_for(i):
        n = state["issued"] - (i + 1) + (4 if i < base_extra["at"] else 0)
        a("s_waitcnt vmcnt(%d)" % n)

    branch(0, 0, 32, QA)
    branch(1, 64, 4, QB)
    a("s_waitcnt lgkmcnt(0)")
    stamp(a, 5)
    a("s_barrier")
    a("v_and_b32 v%d, 63, v0" % T0)
    a("s_lshr_b32 s6, s5, 2")
    a("s_and_b32 s7, s5, 3")
    a("s_lshl_b32 s8, s6, 11")
    a("s_lshl_b32 s9, s7, 9")
    a("s_add_u32 s8, s8, s9")
    a("v_lshlrev_b32 v%d, 3, v%d" % (T1, T0))
    a("v_add_u32 v%d, s8, v%d" % (T2, T1))
    a("s_lshl_b32 s8, s6, 8")
    a("s_lshl_b32 s9, s7, 3")
    a("s_add_u32 s8, s8, s9")
    a("v_mov_b32 v%d, s8" % T0)
    OB = 88
    MLB = 104
    for ws in range(8):
        a("ds_read_b64 v[%d:%d], v%d offset:%d" % (MLB + 2 * ws, MLB + 2 * ws + 1, T0, L_ML + ws * 32))
    for ws in range(8):
        a("ds_read_b64 v[%d:%d], v%d offset:%d" % (OB + 2 * ws, OB + 2 * ws + 1, T2, L_O + ws * 4096))
    a("s_waitcnt lgkmcnt(0)")
    a("v_max_f32 v%d, v%d, v%d" % (M, MLB, MLB + 2))
    for ws in range(2, 8, 2):
        a("v_max3_f32 v%d, v%d, v%d, v%d" % (M, M, MLB + 2 * ws, MLB + 2 * ws + 2))
    a("v_mul_f32 v%d, s15, v%d" % (MC, M))
    for ws in range(8):
        a("v_fma_f32 v%d, v%d, s15, -v%d" % (MLB + 2 * ws, MLB + 2 * ws, MC))
    for ws in range(8):
        a("v_exp_f32 v%d, v%d" % (MLB + 2 * ws, MLB + 2 * ws))
    a("v_mul_f32 v%d, v%d, v%d" % (MC, MLB, MLB + 1))
    a("v_mul_f32 v%d, v%d, v%d" % (OL, MLB, OB))
    a("v_mul_f32 v%d, v%d, v%d" % (OL + 1, MLB, OB + 1))
    for ws in range(1, 8):
        a("v_fmac_f32 v%d, v%d, v%d" % (MC, MLB + 2 * ws, MLB + 2 * ws + 1))
        a("v_fmac_f32 v%d, v%d, v%d" % (OL, MLB + 2 * ws, OB + 2 * ws))
        a("v_fmac_f32 v%d, v%d, v%d" % (OL + 1, MLB + 2 * ws, OB + 2 * ws + 1))
    a("s_lshl_b32 s8, s6, 5")
    a("s_lshl_b32 s9, s3, 2")
    a("s_add_u32 s8, s8, s9")
    a("s_add_u32 s8, s8, s7")
    a("s_lshl_b32 s8, s8, 5")
    a("s_add_u32 s8, s8, s4")
    a("s_lshl_b32 s9, s8, 9")
    a("s_add_u32 s9, s9, 0x%x" % WS_PO)
    a("buffer_store_dwordx2 v[%d:%d], v%d, s[60:63], s9 offen" % (OL, OL + 1, T1))
    a("s_lshl_b32 s9, s8, 3")
    a("s_add_u32 s9, s9, 0x%x" % WS_ML)
    a("s_mov_b64 exec, 1")
    a("buffer_store_dwordx2 v[%d:%d], off, s[60:63], s9" % (M, MC))
    a("s_mov_b64 exec, -1")
    stamp(a, 6)

    a.label("L_end")
    a("s_endpgm")
    return name, 256


def k_comb(a):
    name = "comb_kernel"
    WOC = 64
    a.raw(".globl %s" % name)
    a.raw(".p2align 8")
    a.raw(".type %s,@function" % name)
    a.label(name)
    a("s_cmp_ge_u32 s2, 256")
    a("s_cbranch_scc1 L_end_c")
    a("s_load_dwordx16 s[16:31], s[0:1], 0")
    a("s_load_dwordx8 s[32:39], s[0:1], 64")
    a("s_load_dwordx2 s[40:41], s[0:1], 96")
    a("s_and_b32 s3, s2, 7")
    a("s_lshr_b32 s4, s2, 3")
    a("v_lshrrev_b32 v9, 6, v0")
    a("v_readfirstlane_b32 s5, v9")
    a("s_lshr_b32 s84, s4, 4")
    a("s_bfe_u32 s86, s4, 0x20002")
    a("s_and_b32 s87, s4, 3")
    a("s_lshl_b32 s88, s3, 2")
    a("s_add_u32 s88, s88, s86")
    a("s_mov_b32 s15, 0x%x" % f2u(C_SCALE))
    a("v_lshrrev_b32 v1, 4, v0")
    a("v_and_b32 v2, 15, v0")
    a("v_lshlrev_b32 v22, 12, v1")
    a("v_lshl_add_u32 v22, v2, 4, v22")
    a("s_lshl_b32 s9, s88, 17")
    a("s_lshl_b32 s10, s87, 8")
    a("s_add_u32 s14, s9, s10")
    a("v_and_b32 v3, 63, v0")
    a("v_and_b32 v4, 31, v0")
    a("v_lshlrev_b32 v5, 3, v4")
    a("s_lshl_b32 s11, s84, 5")
    a("s_add_u32 s11, s11, s88")
    a("s_lshl_b32 s12, s11, 8")
    a("s_add_u32 s12, s12, 0x%x" % WS_ML)
    a("v_bfe_u32 v6, v0, 5, 1")
    a("v_lshlrev_b32 v7, 9, v4")
    a("v_lshl_add_u32 v7, v6, 5, v7")
    a("s_lshl_b32 s13, s11, 14")
    a("s_lshl_b32 s6, s5, 6")
    a("s_add_u32 s13, s13, s6")
    a("s_add_u32 s13, s13, 0x%x" % WS_PO)
    a("s_waitcnt lgkmcnt(0)")
    srd(a, 60, 40, 41, WS_SIZE)
    a("buffer_load_dwordx2 v[8:9], v5, s[60:63], s12 offen")
    a("buffer_load_dwordx4 v[12:15], v7, s[60:63], s13 offen")
    a("buffer_load_dwordx4 v[16:19], v7, s[60:63], s13 offen offset:16")
    a("s_cmp_eq_u32 s84, 1")
    srd_sel(a, 72, 24, 34, 0x400000)
    for i in range(4):
        a("buffer_load_dwordx4 v[%d:%d], v22, s[72:75], s14 offen offset:%d nt" % (WOC + 4 * i, WOC + 3 + 4 * i, 1024 * i))
    srd(a, 76, 38, 39, 256)
    srd(a, 80, 36, 37, 2048)
    a("v_xor_b32 v10, 16, v3")
    a("v_lshlrev_b32 v10, 2, v10")
    a("v_bfe_u32 v11, v0, 4, 1")
    a("v_cmp_eq_u32 s[98:99], 1, v11")
    a("v_lshlrev_b32 v21, 9, v1")
    a("v_lshl_add_u32 v21, v2, 5, v21")
    a("v_and_b32 v11, 127, v0")
    a("v_lshlrev_b32 v11, 2, v11")
    a("s_waitcnt vmcnt(6)")
    a("v_mov_b32 v36, v8")
    for rot in (1, 2, 4, 8):
        a("v_max_f32_dpp v36, v36, v36 row_ror:%d row_mask:0xf bank_mask:0xf" % rot)
    a("ds_bpermute_b32 v37, v10, v36")
    a("s_waitcnt lgkmcnt(0)")
    a("v_max_f32 v36, v36, v37")
    a("v_mul_f32 v36, s15, v36")
    a("v_fma_f32 v38, v8, s15, -v36")
    a("v_exp_f32 v38, v38")
    a("s_waitcnt vmcnt(4)")
    a("v_mul_f32 v9, v38, v9")
    for k in range(8):
        a("v_mul_f32 v%d, v38, v%d" % (12 + k, 12 + k))
    vals = [9] + list(range(12, 20))
    for rot in (1, 2, 4, 8):
        for r in vals:
            a("v_add_f32_dpp v%d, v%d, v%d row_ror:%d row_mask:0xf bank_mask:0xf" % (r, r, r, rot))
    for n, r in enumerate(vals):
        a("ds_bpermute_b32 v%d, v10, v%d" % (40 + n, r))
    a("s_waitcnt lgkmcnt(0)")
    for n, r in enumerate(vals):
        a("v_add_f32 v%d, v%d, v%d" % (r, r, 40 + n))
    a("v_rcp_f32 v9, v9")
    for i in range(4):
        a("v_cndmask_b32 v%d, v%d, v%d, s[98:99]" % (44 + i, 12 + i, 16 + i))
    for i in range(4):
        a("v_mul_f32 v%d, v%d, v9" % (44 + i, 44 + i))
    for i in range(4):
        a("v_cvt_pk_bf16_f32 v%d, v%d, v%d" % (44 + i, 44 + i, 44 + i))
    for i in range(4):
        a("v_lshlrev_b32 v%d, 16, v%d" % (44 + i, 44 + i))
    a("s_waitcnt vmcnt(0)")
    for i in range(4):
        for r in range(4):
            a("v_lshlrev_b32 v37, 16, v%d" % (WOC + 4 * i + r))
            a("v_and_b32 v38, 0xffff0000, v%d" % (WOC + 4 * i + r))
            if i == 0:
                a("v_mul_f32 v%d, v44, v37" % (48 + 2 * r))
                a("v_mul_f32 v%d, v44, v38" % (49 + 2 * r))
            else:
                a("v_fmac_f32 v%d, v%d, v37" % (48 + 2 * r, 44 + i))
                a("v_fmac_f32 v%d, v%d, v38" % (49 + 2 * r, 44 + i))
    a("ds_write_b128 v21, v[48:51]")
    a("ds_write_b128 v21, v[52:55] offset:16")
    a("s_waitcnt lgkmcnt(0)")
    a("s_barrier")
    a("s_lshl_b32 s9, s84, 2")
    a("s_add_u32 s9, s9, s87")
    a("s_cmp_ge_u32 s5, 2")
    a("s_cbranch_scc1 L_after_y")
    for k in range(32):
        a("ds_read_b32 v%d, v11 offset:%d" % (80 + k, 512 * k))
    a("s_waitcnt lgkmcnt(0)")
    for st in (1, 2, 4, 8, 16):
        for k in range(0, 32, 2 * st):
            a("v_add_f32 v%d, v%d, v%d" % (80 + k, 80 + k, 80 + k + st))
    a("s_lshl_b32 s10, s9, 5")
    a("s_add_u32 s10, s10, s88")
    a("s_lshl_b32 s10, s10, 9")
    a("s_add_u32 s10, s10, 0x%x" % WS_Y)
    a("buffer_store_dword v80, v11, s[60:63], s10 offen%s" % (" sc1" if LAST else ""))
    if LAST:
        a("s_waitcnt vmcnt(0)")
    a.label("L_after_y")
    if LAST:
        a("s_barrier")
        a("s_cmp_lg_u32 s5, 0")
        a("s_cbranch_scc1 L_tick")
        a("v_mov_b32 v20, 1")
        a("s_lshl_b32 s10, s9, 4")
        a("s_mov_b64 exec, 1")
        a("buffer_atomic_add v20, off, s[76:79], s10 sc0 sc1")
        a("s_waitcnt vmcnt(0)")
        a("v_mov_b32 v23, 16384")
        a("ds_write_b32 v23, v20")
        a("s_waitcnt lgkmcnt(0)")
        a("s_mov_b64 exec, -1")
        a.label("L_tick")
        a("s_barrier")
        a("v_mov_b32 v23, 16384")
        a("ds_read_b32 v20, v23")
        a("s_waitcnt lgkmcnt(0)")
        a("v_readfirstlane_b32 s10, v20")
        a("s_cmp_lg_u32 s10, 31")
        a("s_cbranch_scc1 L_end_c")
        a("v_lshrrev_b32 v6, 5, v0")
        a("v_lshlrev_b32 v7, 10, v6")
        a("v_lshl_add_u32 v7, v4, 4, v7")
        a("v_lshlrev_b32 v21, 9, v6")
        a("v_lshl_add_u32 v21, v4, 4, v21")
        a("s_lshl_b32 s10, s9, 14")
        a("s_add_u32 s10, s10, 0x%x" % WS_Y)
        a("buffer_load_dwordx4 v[12:15], v7, s[60:63], s10 offen sc1")
        a("buffer_load_dwordx4 v[16:19], v7, s[60:63], s10 offen offset:512 sc1")
        a("s_waitcnt vmcnt(0)")
        for k in range(4):
            a("v_add_f32 v%d, v%d, v%d" % (12 + k, 12 + k, 16 + k))
        a("ds_write_b128 v21, v[12:15]")
        a("s_waitcnt lgkmcnt(0)")
        a("s_barrier")
        a("s_cmp_ge_u32 s5, 2")
        a("s_cbranch_scc1 L_end_c")
        for k in range(16):
            a("ds_read_b32 v%d, v11 offset:%d" % (44 + k, 512 * k))
        a("s_waitcnt lgkmcnt(0)")
        for st in (1, 2, 4, 8):
            for k in range(0, 16, 2 * st):
                a("v_add_f32 v%d, v%d, v%d" % (44 + k, 44 + k, 44 + k + st))
        a("v_cvt_pk_bf16_f32 v44, v44, v44")
        a("v_lshrrev_b32 v11, 1, v11")
        a("s_lshl_b32 s9, s9, 8")
        a("buffer_store_short v44, v11, s[80:83], s9 offen")
    a.label("L_end_c")
    a("s_endpgm")
    return name, 112


def k_final(a):
    name = "final_kernel"
    a.raw(".globl %s" % name)
    a.raw(".p2align 8")
    a.raw(".type %s,@function" % name)
    a.label(name)
    a("s_cmp_ge_u32 s2, 8")
    a("s_cbranch_scc1 L_end_f")
    a("s_load_dwordx2 s[36:37], s[0:1], 80")
    a("s_load_dwordx2 s[40:41], s[0:1], 96")
    a("v_lshrrev_b32 v9, 6, v0")
    a("v_readfirstlane_b32 s5, v9")
    a("v_and_b32 v4, 31, v0")
    a("v_lshrrev_b32 v6, 5, v0")
    a("v_lshlrev_b32 v7, 10, v6")
    a("v_lshl_add_u32 v7, v4, 4, v7")
    a("v_lshlrev_b32 v21, 9, v6")
    a("v_lshl_add_u32 v21, v4, 4, v21")
    a("v_and_b32 v11, 127, v0")
    a("v_lshlrev_b32 v11, 2, v11")
    a("s_lshl_b32 s10, s2, 14")
    a("s_add_u32 s10, s10, 0x%x" % WS_Y)
    a("s_waitcnt lgkmcnt(0)")
    srd(a, 60, 40, 41, WS_SIZE)
    srd(a, 80, 36, 37, 2048)
    a("buffer_load_dwordx4 v[12:15], v7, s[60:63], s10 offen")
    a("buffer_load_dwordx4 v[16:19], v7, s[60:63], s10 offen offset:512")
    a("s_waitcnt vmcnt(0)")
    for k in range(4):
        a("v_add_f32 v%d, v%d, v%d" % (12 + k, 12 + k, 16 + k))
    a("ds_write_b128 v21, v[12:15]")
    a("s_waitcnt lgkmcnt(0)")
    a("s_barrier")
    a("s_cmp_ge_u32 s5, 2")
    a("s_cbranch_scc1 L_end_f")
    for k in range(16):
        a("ds_read_b32 v%d, v11 offset:%d" % (44 + k, 512 * k))
    a("s_waitcnt lgkmcnt(0)")
    for st in (1, 2, 4, 8):
        for k in range(0, 16, 2 * st):
            a("v_add_f32 v%d, v%d, v%d" % (44 + k, 44 + k, 44 + k + st))
    a("v_cvt_pk_bf16_f32 v44, v44, v44")
    a("v_lshrrev_b32 v11, 1, v11")
    a("s_lshl_b32 s9, s2, 8")
    a("buffer_store_short v44, v11, s[80:83], s9 offen")
    a.label("L_end_f")
    a("s_endpgm")
    return name, 64


def main():
    a = Asm()
    a.raw('.amdgcn_target "amdgcn-amd-amdhsa--gfx950"')
    a.raw(".text")
    ks = [k_qproj(a), kernel(a), k_comb(a)] + ([] if LAST else [k_final(a)])
    body = a.finalize()
    launch = ("; @launch kernel=qproj_kernel grid=(256,1,1) block=(512,1,1) lds=16384\n"
              "; @launch kernel=attn_kernel grid=(256,1,1) block=(512,1,1) lds=33792\n"
              "; @launch kernel=comb_kernel grid=(256,1,1) block=(512,1,1) lds=16640\n")
    if not LAST:
        launch += "; @launch kernel=final_kernel grid=(8,1,1) block=(512,1,1) lds=8192\n"
    out = HEADER + launch + body + '.section .rodata,"a"\n'
    for n, v in ks:
        out += ".p2align 6\n" + descriptor(n, v)
    path = sys.argv[1] if len(sys.argv) > 1 else "cdna_kernels/%s.s" % NAME
    open(path, "w").write(out)


if __name__ == "__main__":
    main()
```

```python
import math
import os
import struct
import sys

sys.path.insert(0, "gen")
from asmlib import Asm

NAME = "concat_heads__gqa_block_cached__sliding_block_cached__decode"
HEADER = open("cdna_kernels/%s.s.ref" % NAME).read().split("; Override launch")[0]

WS_ML = 0x8000
WS_Y = 0x40000
WS_QP = 0x80000
WS_PO = 0x100000
WS_SIZE = 0x300000

C_SCALE = (128 ** -0.5) * math.log2(math.e)
SPIN_LIMIT = 20000

NLDS = int(os.environ.get("NLDS", "0"))
L_ML = 0
L_O = 1024
L_C2 = 33792
L_C1 = 50176
LDS_BYTES = 58368

POOL0 = 88
NSLOT = int(os.environ.get("NSLOT", "37"))
WO = 240
VZ, VZO = 236, 237
STAMP = int(os.environ.get("STAMP", "0"))
PACE = int(os.environ.get("PACE", "4"))
DIAG = int(os.environ.get("DIAG", "0"))
NPF = int(os.environ.get("NPF", "0"))
LAST = int(os.environ.get("LAST", "1"))
WOWARM = int(os.environ.get("WOWARM", "0"))


def f2u(x):
    return struct.unpack("<I", struct.pack("<f", x))[0]


def srd(a, d, lo, hi, nbytes):
    a("s_mov_b32 s%d, s%d" % (d, lo))
    a("s_and_b32 s%d, s%d, 0xffff" % (d + 1, hi))
    a("s_mov_b32 s%d, 0x%x" % (d + 2, nbytes))
    a("s_mov_b32 s%d, 0x00020000" % (d + 3))


def srd_sel(a, d, loA, loB, nbytes):
    a("s_cselect_b32 s%d, s%d, s%d" % (d, loB, loA))
    a("s_cselect_b32 s%d, s%d, s%d" % (d + 1, loB + 1, loA + 1))
    a("s_and_b32 s%d, s%d, 0xffff" % (d + 1, d + 1))
    a("s_mov_b32 s%d, 0x%x" % (d + 2, nbytes))
    a("s_mov_b32 s%d, 0x00020000" % (d + 3))


def descriptor(name, vgpr, sgpr=100):
    return """.amdhsa_kernel %s
  .amdhsa_next_free_vgpr %d
  .amdhsa_next_free_sgpr %d
  .amdhsa_accum_offset %d
  .amdhsa_group_segment_fixed_size 0
  .amdhsa_kernarg_size 104
  .amdhsa_user_sgpr_count 2
  .amdhsa_user_sgpr_kernarg_segment_ptr 1
  .amdhsa_system_sgpr_workgroup_id_x 1
.end_amdhsa_kernel
""" % (name, vgpr, sgpr, (vgpr + 3) // 4 * 4)


def stamp(a, idx, wave=0, vt=238):
    if not STAMP:
        return
    lab = "L_st%d" % idx
    a("s_cmp_lg_u32 s5, %d" % wave)
    a("s_cbranch_scc1 %s" % lab)
    a("s_memrealtime s[92:93]")
    a("s_waitcnt lgkmcnt(0)")
    a("v_mov_b32 v%d, s92" % vt)
    a("s_lshl_b32 s94, s2, 6")
    a("s_add_u32 s94, s94, 0x%x" % (0x200000 + idx * 4))
    a("s_mov_b64 s[96:97], exec")
    a("s_mov_b64 exec, 1")
    if STAMP == 1:
        a("buffer_store_dword v%d, off, s[60:63], s94" % vt)
    else:
        a("buffer_atomic_umax v%d, off, s[76:79], 0 offset:%d sc1" % (vt, idx * 4))
        if idx == 0:
            a("s_nop 4")
            a("v_sub_u32 v%d, 0, v%d" % (vt, vt))
            a("buffer_atomic_umax v%d, off, s[76:79], 0 offset:60 sc1" % vt)
    a("s_mov_b64 exec, s[96:97]")
    a.label(lab)


_dn = [0]


def dstamp(a, idx, vt):
    if not DIAG:
        return
    _dn[0] += 1
    lab = "L_ds%d" % _dn[0]
    a("s_cmp_lg_u32 s5, 0")
    a("s_cbranch_scc1 %s" % lab)
    a("s_memrealtime s[92:93]")
    a("s_waitcnt lgkmcnt(0)")
    a("v_mov_b32 v%d, s92" % vt)
    a("s_lshl_b32 s94, s2, 2")
    a("s_add_u32 s94, s94, 0x%x" % (0x200000 + idx * 1024))
    a("s_mov_b64 s[96:97], exec")
    a("s_mov_b64 exec, 1")
    a("buffer_store_dword v%d, off, s[60:63], s94 sc1" % vt)
    a("s_mov_b64 exec, s[96:97]")
    a.label(lab)


def k_qproj(a):
    name = "qproj_kernel"
    a.raw(".globl %s" % name)
    a.raw(".p2align 8")
    a.raw(".type %s,@function" % name)
    a.label(name)
    a("s_cmp_ge_u32 s2, 256")
    a("s_cbranch_scc1 L_end_q")
    a("s_load_dwordx16 s[16:31], s[0:1], 0")
    a("s_load_dwordx8 s[32:39], s[0:1], 64")
    a("s_load_dwordx2 s[40:41], s[0:1], 96")
    a("s_and_b32 s3, s2, 7")
    a("s_lshr_b32 s4, s2, 3")
    T0, T1, T2 = 8, 9, 39
    QW, QX, QACC = 12, 28, 32
    a("v_and_b32 v%d, 63, v0" % T0)
    a("v_lshrrev_b32 v%d, 6, v0" % T1)
    a("v_readfirstlane_b32 s5, v%d" % T1)
    a("s_lshr_b32 s84, s4, 4")
    a("s_bfe_u32 s86, s4, 0x20002")
    a("s_and_b32 s87, s4, 3")
    a("s_lshl_b32 s88, s3, 2")
    a("s_add_u32 s88, s88, s86")
    a("s_lshl_b32 s14, s3, 10")
    a("v_lshrrev_b32 v%d, 4, v%d" % (T2, T0))
    a("v_lshl_add_u32 v4, v%d, 4, v%d" % (T1, T2))
    a("v_lshlrev_b32 v5, 13, v4")
    a("v_and_b32 v6, 15, v0")
    a("v_lshl_add_u32 v5, v6, 4, v5")
    a("v_lshlrev_b32 v4, 1, v4")
    a("s_lshl_b32 s89, s86, 20")
    a("s_lshl_b32 s9, s87, 8")
    a("s_add_u32 s89, s89, s9")
    a("s_add_u32 s89, s89, s14")
    a("s_lshl_b32 s85, s86, 8")
    a("s_waitcnt lgkmcnt(0)")
    a("s_cmp_eq_u32 s84, 1")
    srd_sel(a, 64, 22, 32, 0x400000)
    a("s_cmp_eq_u32 s84, 1")
    srd_sel(a, 68, 16, 26, 1024)
    for i in range(4):
        a("s_add_u32 s9, s89, %d" % (i * 32768))
        a("buffer_load_dwordx4 v[%d:%d], v5, s[64:67], s9 offen nt" % (QW + 4 * i, QW + 3 + 4 * i))
    for i in range(4):
        a("buffer_load_ushort v%d, v4, s[68:71], s85 offen offset:%d" % (QX + i, 8 * i))
    srd(a, 60, 40, 41, WS_SIZE)
    dstamp(a, 0, 47)
    if NPF:
        srd(a, 44, 18, 19, 0x4000000)
        a("s_lshl_b32 s6, s3, 23")
        a("s_lshl_b32 s7, s4, 18")
        a("s_lshl_b32 s8, s5, 15")
        a("s_add_u32 s7, s7, s8")
        a("s_add_u32 s12, s6, s7")
        a("v_lshlrev_b32 v42, 4, v%d" % T0)
        for i in range(NPF):
            a("s_add_u32 s6, s12, %d" % ((i >> 2) * 4096))
            a("buffer_load_dwordx4 v[%d:%d], v42, s[44:47], s6 offen offset:%d" % (80 + 4 * (i & 3), 83 + 4 * (i & 3), (i & 3) * 1024))
    a("s_waitcnt vmcnt(%d)" % 0 if DIAG else NPF)
    for i in range(4):
        a("v_lshlrev_b32 v44, 16, v%d" % (QX + i))
        for r in range(4):
            a("v_lshlrev_b32 v45, 16, v%d" % (QW + 4 * i + r))
            a("v_and_b32 v46, 0xffff0000, v%d" % (QW + 4 * i + r))
            if i == 0:
                a("v_mul_f32 v%d, v44, v45" % (QACC + 2 * r))
                a("v_mul_f32 v%d, v44, v46" % (QACC + 1 + 2 * r))
            else:
                a("v_fmac_f32 v%d, v44, v45" % (QACC + 2 * r))
                a("v_fmac_f32 v%d, v44, v46" % (QACC + 1 + 2 * r))
    a("v_lshrrev_b32 v44, 4, v0")
    a("v_lshlrev_b32 v44, 9, v44")
    a("v_lshl_add_u32 v44, v6, 5, v44")
    a("ds_write_b128 v44, v[%d:%d]" % (QACC, QACC + 3))
    a("ds_write_b128 v44, v[%d:%d] offset:16" % (QACC + 4, QACC + 7))
    a("s_waitcnt lgkmcnt(0)")
    a("s_barrier")
    a("s_cmp_ge_u32 s5, 2")
    a("s_cbranch_scc1 L_end_q")
    a("v_lshlrev_b32 v45, 2, v0")
    for k in range(32):
        a("ds_read_b32 v%d, v45 offset:%d" % (48 + k, 512 * k))
    a("s_waitcnt lgkmcnt(0)")
    for k in range(0, 32, 2):
        a("v_add_f32 v%d, v%d, v%d" % (48 + k, 48 + k, 49 + k))
    for k in range(0, 32, 4):
        a("v_add_f32 v%d, v%d, v%d" % (48 + k, 48 + k, 50 + k))
    for k in range(0, 32, 8):
        a("v_add_f32 v%d, v%d, v%d" % (48 + k, 48 + k, 52 + k))
    a("v_add_f32 v48, v48, v56")
    a("v_add_f32 v64, v64, v72")
    a("v_add_f32 v48, v48, v64")
    a("s_lshl_b32 s9, s84, 3")
    a("s_add_u32 s9, s9, s3")
    a("s_lshl_b32 s9, s9, 2")
    a("s_add_u32 s9, s9, s87")
    a("s_lshl_b32 s9, s9, 2")
    a("s_add_u32 s9, s9, s86")
    a("s_lshl_b32 s9, s9, 9")
    a("s_add_u32 s9, s9, 0x%x" % WS_QP)
    a("buffer_store_dword v48, v45, s[60:63], s9 offen")
    dstamp(a, 1, 47)
    a.label("L_end_q")
    a("s_endpgm")
    return name, 96


def kernel(a):
    name = "attn_kernel"
    a.raw(".globl %s" % name)
    a.raw(".p2align 8")
    a.raw(".type %s,@function" % name)
    a.label(name)
    a("s_cmp_ge_u32 s2, 256")
    a("s_cbranch_scc1 L_end")
    a("s_load_dwordx16 s[16:31], s[0:1], 0")
    a("s_load_dwordx8 s[32:39], s[0:1], 64")
    a("s_load_dwordx2 s[40:41], s[0:1], 96")
    a("s_and_b32 s3, s2, 7")
    a("s_lshr_b32 s4, s2, 3")

    VK, VV, MA, MB, X16, X32, LO, T0, T1 = 1, 2, 3, 4, 5, 6, 7, 8, 9
    QA, QB = 10, 14
    ZR = 18
    OL, OH = 28, 32
    M, MC, LS, T2 = 36, 37, 38, 39
    DB = 40
    SP = 56
    a("v_and_b32 v%d, 63, v0" % T0)
    a("v_lshrrev_b32 v%d, 6, v0" % T1)
    a("v_readfirstlane_b32 s5, v%d" % T1)
    a("s_lshr_b32 s84, s4, 4")
    a("s_bfe_u32 s86, s4, 0x20002")
    a("s_and_b32 s87, s4, 3")
    a("s_lshl_b32 s88, s3, 2")
    a("s_add_u32 s88, s88, s86")
    a("v_lshrrev_b32 v%d, 4, v%d" % (T2, T0))
    a("v_lshlrev_b32 v%d, 4, v%d" % (VV, T0))
    a("v_bfe_u32 v%d, v%d, 2, 2" % (T1, T0))
    a("v_lshlrev_b32 v%d, 8, v%d" % (VK, T1))
    a("v_lshl_add_u32 v%d, v%d, 6, v%d" % (VK, T2, VK))
    a("v_and_b32 v%d, 3, v%d" % (M, T0))
    a("v_lshl_add_u32 v%d, v%d, 4, v%d" % (VK, M, VK))
    a("v_lshlrev_b32 v84, 11, v%d" % T1)
    a("v_lshl_add_u32 v84, v%d, 7, v84" % T2)
    a("v_lshl_add_u32 v84, v%d, 5, v84" % M)
    a("s_lshl_b32 s6, s3, 23")
    a("s_lshl_b32 s7, s4, 18")
    a("s_lshl_b32 s8, s5, 15")
    a("s_add_u32 s7, s7, s8")
    a("s_add_u32 s12, s6, s7")
    a("s_lshl_b32 s7, s4, 15")
    a("s_lshl_b32 s8, s5, 12")
    a("s_add_u32 s7, s7, s8")
    a("s_add_u32 s13, s6, s7")
    a("s_add_u32 s13, s13, %d" % (28672 * 256))
    a("s_waitcnt lgkmcnt(0)")
    srd(a, 60, 40, 41, WS_SIZE)
    srd(a, 44, 18, 19, 0x4000000)
    QT = POOL0 + 4 * (NSLOT - 16)
    for b in range(2):
        a("s_add_u32 s6, s3, %d" % (8 * b))
        a("s_lshl_b32 s6, s6, 13")
        a("s_add_u32 s6, s6, 0x%x" % WS_QP)
        for rb in range(4):
            r = QT + 32 * b + 8 * rb
            a("buffer_load_dwordx4 v[%d:%d], v84, s[60:63], s6 offen offset:%d" % (r, r + 3, 512 * rb))
            a("buffer_load_dwordx4 v[%d:%d], v84, s[60:63], s6 offen offset:%d" % (r + 4, r + 7, 512 * rb + 16))

    loads = []
    for kq in range(32):
        loads.append((44, 12, VK, kq))
    for kq in range(32):
        loads.append((48, 12, VV, kq))
    for kq in range(4):
        loads.append((52, 13, VK, kq))
    for kq in range(4):
        loads.append((56, 13, VV, kq))
    NL = len(loads)
    state = {"issued": 0}

    def slot(i):
        return POOL0 + 4 * (i % NSLOT)

    def issue():
        i = state["issued"]
        if i >= NL:
            return
        sr, sb, vo, kq = loads[i]
        a("s_add_u32 s6, s%d, %d" % (sb, (kq >> 2) * 4096))
        r = slot(i)
        a("buffer_load_dwordx4 v[%d:%d], v%d, s[%d:%d], s6 offen offset:%d nt" % (r, r + 3, vo, sr, sr + 3, (kq & 3) * 1024))
        state["issued"] += 1

    def wait_for(i):
        n = state["issued"] - (i + 1)
        a("s_waitcnt vmcnt(%d)" % n)

    for _ in range(NSLOT - 16):
        issue()
    srd(a, 48, 20, 21, 0x4000000)
    srd(a, 52, 28, 29, 0x4000000)
    srd(a, 56, 30, 31, 0x4000000)
    srd(a, 76, 38, 39, 256)
    srd(a, 80, 36, 37, 2048)
    a("s_cmp_eq_u32 s84, 1")
    srd_sel(a, 72, 24, 34, 0x400000)
    dstamp(a, 2, 238)
    a("v_lshlrev_b32 v%d, 9, v%d" % (LO, T1))
    a("v_lshl_add_u32 v%d, v%d, 7, v%d" % (LO, T2, LO))
    a("v_lshl_add_u32 v%d, v%d, 2, v%d" % (LO, M, LO))
    a("s_lshl_b32 s6, s5, 12")
    a("s_add_u32 s6, s6, %d" % L_O)
    a("v_add_u32 v%d, s6, v%d" % (LO, LO))
    a("s_mov_b32 s15, 0x%x" % f2u(C_SCALE))
    a("v_mov_b32 v%d, 0" % MA)
    a("v_mov_b32 v%d, 0" % MB)
    a("v_mov_b32 v%d, 0xffff" % MC)
    a("v_mov_b32 v%d, 0xffff0000" % LS)
    a("v_cmp_eq_u32 vcc, 0, v%d" % M)
    a("v_cndmask_b32 v%d, v%d, v%d, vcc" % (MA, MA, MC))
    a("v_cmp_eq_u32 vcc, 1, v%d" % M)
    a("v_cndmask_b32 v%d, v%d, v%d, vcc" % (MA, MA, LS))
    a("v_cmp_eq_u32 vcc, 2, v%d" % M)
    a("v_cndmask_b32 v%d, v%d, v%d, vcc" % (MB, MB, MC))
    a("v_cmp_eq_u32 vcc, 3, v%d" % M)
    a("v_cndmask_b32 v%d, v%d, v%d, vcc" % (MB, MB, LS))
    a("v_xor_b32 v%d, 16, v%d" % (X16, T0))
    a("v_lshlrev_b32 v%d, 2, v%d" % (X16, X16))
    a("v_xor_b32 v%d, 32, v%d" % (X32, T0))
    a("v_lshlrev_b32 v%d, 2, v%d" % (X32, X32))
    for z in (0, 1, 4, 5, 8, 9):
        a("v_mov_b32 v%d, 0" % (ZR + z))
    a("v_lshrrev_b32 v87, 4, v0")
    a("v_lshlrev_b32 v87, 12, v87")
    a("v_and_b32 v86, 15, v0")
    a("v_lshl_add_u32 v87, v86, 4, v87")
    a("s_lshl_b32 s9, s88, 17")
    a("s_lshl_b32 s10, s87, 8")
    a("s_add_u32 s11, s9, s10")
    a("s_waitcnt vmcnt(%d)" % (NSLOT - 16))
    for b in range(2):
        r = QT + 32 * b
        for j in range(8):
            a("v_add_f32 v%d, v%d, v%d" % (r + j, r + j, r + 8 + j))
            a("v_add_f32 v%d, v%d, v%d" % (r + 16 + j, r + 16 + j, r + 24 + j))
        for j in range(8):
            a("v_add_f32 v%d, v%d, v%d" % (r + j, r + j, r + 16 + j))
        for j in range(4):
            a("v_cvt_pk_bf16_f32 v%d, v%d, v%d" % (QA + 4 * b + j, r + 2 * j, r + 2 * j + 1))
    for _ in range(16):
        issue()
    stamp(a, 1)

    def reduce_diag(kq):
        d = DB + 4 * (kq % 4)
        s = SP + kq
        a("v_mov_b32_dpp v%d, v%d quad_perm:[0,0,0,0] row_mask:0xf bank_mask:0xf" % (s, d))
        for i in (1, 2, 3):
            a("v_add_f32_dpp v%d, v%d, v%d quad_perm:[%d,%d,%d,%d] row_mask:0xf bank_mask:0xf" % (s, d + i, s, i, i, i, i))

    wo_done = {"x": False}

    def branch(beta, li0, nkq, q):
        for kq in range(nkq):
            li = li0 + kq
            wait_for(li)
            d = DB + 4 * (kq % 4)
            r = slot(li)
            a("v_mfma_f32_16x16x32_bf16 v[%d:%d], v[%d:%d], v[%d:%d], 0" % (d, d + 3, r, r + 3, q, q + 3))
            issue()
            if kq >= 2:
                reduce_diag(kq - 2)
        reduce_diag(nkq - 2)
        reduce_diag(nkq - 1)
        a("v_max_f32 v%d, v%d, v%d" % (M, SP, SP + 1))
        for k in range(2, nkq, 2):
            a("v_max3_f32 v%d, v%d, v%d, v%d" % (M, M, SP + k, SP + k + 1))
        a("ds_bpermute_b32 v%d, v%d, v%d" % (T0, X16, M))
        a("s_waitcnt lgkmcnt(0)")
        a("v_max_f32 v%d, v%d, v%d" % (M, M, T0))
        a("ds_bpermute_b32 v%d, v%d, v%d" % (T0, X32, M))
        a("s_waitcnt lgkmcnt(0)")
        a("v_max_f32 v%d, v%d, v%d" % (M, M, T0))
        a("v_mul_f32 v%d, s15, v%d" % (MC, M))
        for k in range(nkq):
            a("v_fma_f32 v%d, v%d, s15, -v%d" % (SP + k, SP + k, MC))
        for k in range(nkq):
            a("v_exp_f32 v%d, v%d" % (SP + k, SP + k))
        a("v_add_f32 v%d, v%d, v%d" % (LS, SP, SP + 1))
        for k in range(2, nkq):
            a("v_add_f32 v%d, v%d, v%d" % (LS, LS, SP + k))

        def prep(kq):
            rr = ZR + 2 + 4 * (kq & 1)
            a("v_cvt_pk_bf16_f32 v%d, v%d, v%d" % (T1, SP + kq, SP + kq))
            a("v_and_b32 v%d, v%d, v%d" % (rr, T1, MA))
            a("v_and_b32 v%d, v%d, v%d" % (rr + 1, T1, MB))

        prep(0)
        for kq in range(nkq):
            li = li0 + nkq + kq
            if kq + 1 < nkq:
                prep(kq + 1)
            wait_for(li)
            r = slot(li)
            rr = ZR + 2 + 4 * (kq & 1)
            cl = "0" if kq == 0 else "v[%d:%d]" % (OL, OL + 3)
            ch = "0" if kq == 0 else "v[%d:%d]" % (OH, OH + 3)
            a("v_mfma_f32_16x16x32_bf16 v[%d:%d], v[%d:%d], v[%d:%d], %s" % (OL, OL + 3, r, r + 3, rr, rr + 3, cl))
            a("v_mfma_f32_16x16x32_bf16 v[%d:%d], v[%d:%d], v[%d:%d], %s" % (OH, OH + 3, r, r + 3, rr - 2, rr + 1, ch))
            issue()
        a("ds_bpermute_b32 v%d, v%d, v%d" % (T0, X16, LS))
        a("s_waitcnt lgkmcnt(0)")
        a("v_add_f32 v%d, v%d, v%d" % (LS, LS, T0))
        a("ds_bpermute_b32 v%d, v%d, v%d" % (T0, X32, LS))
        a("s_waitcnt lgkmcnt(0)")
        a("v_add_f32 v%d, v%d, v%d" % (MC, LS, T0))
        for i in range(4):
            a("ds_write_b32 v%d, v%d offset:%d" % (LO, OL + i, beta * 2048 + 32 * i))
            a("ds_write_b32 v%d, v%d offset:%d" % (LO, OH + i, beta * 2048 + 32 * i + 16))
        a("v_bfe_u32 v%d, v0, 2, 2" % T0)
        a("v_lshlrev_b32 v%d, 3, v%d" % (T0, T0))
        a("s_lshl_b32 s6, s5, 5")
        a("v_add_u32 v%d, s6, v%d" % (T0, T0))
        a("ds_write_b64 v%d, v[%d:%d] offset:%d" % (T0, M, MC, L_ML + beta * 256))

    for i in range(4 if WOWARM else 0):
        a("buffer_load_dwordx4 v[%d:%d], v87, s[72:75], s11 offen offset:%d" % (WO + 4 * i, WO + 3 + 4 * i, 1024 * i))
    base_extra = {"n": 4, "at": state["issued"] if WOWARM else 0}
    _wf = wait_for

    def wait_for(i):
        n = state["issued"] - (i + 1) + (4 if i < base_extra["at"] else 0)
        a("s_waitcnt vmcnt(%d)" % n)

    branch(0, 0, 32, QA)
    branch(1, 64, 4, QB)
    a("s_waitcnt lgkmcnt(0)")
    stamp(a, 5)
    a("s_barrier")
    a("v_and_b32 v%d, 63, v0" % T0)
    a("s_lshr_b32 s6, s5, 2")
    a("s_and_b32 s7, s5, 3")
    a("s_lshl_b32 s8, s6, 11")
    a("s_lshl_b32 s9, s7, 9")
    a("s_add_u32 s8, s8, s9")
    a("v_lshlrev_b32 v%d, 3, v%d" % (T1, T0))
    a("v_add_u32 v%d, s8, v%d" % (T2, T1))
    a("s_lshl_b32 s8, s6, 8")
    a("s_lshl_b32 s9, s7, 3")
    a("s_add_u32 s8, s8, s9")
    a("v_mov_b32 v%d, s8" % T0)
    OB = 88
    MLB = 104
    for ws in range(8):
        a("ds_read_b64 v[%d:%d], v%d offset:%d" % (MLB + 2 * ws, MLB + 2 * ws + 1, T0, L_ML + ws * 32))
    for ws in range(8):
        a("ds_read_b64 v[%d:%d], v%d offset:%d" % (OB + 2 * ws, OB + 2 * ws + 1, T2, L_O + ws * 4096))
    a("s_waitcnt lgkmcnt(0)")
    a("v_max_f32 v%d, v%d, v%d" % (M, MLB, MLB + 2))
    for ws in range(2, 8, 2):
        a("v_max3_f32 v%d, v%d, v%d, v%d" % (M, M, MLB + 2 * ws, MLB + 2 * ws + 2))
    a("v_mul_f32 v%d, s15, v%d" % (MC, M))
    for ws in range(8):
        a("v_fma_f32 v%d, v%d, s15, -v%d" % (MLB + 2 * ws, MLB + 2 * ws, MC))
    for ws in range(8):
        a("v_exp_f32 v%d, v%d" % (MLB + 2 * ws, MLB + 2 * ws))
    a("v_mul_f32 v%d, v%d, v%d" % (MC, MLB, MLB + 1))
    a("v_mul_f32 v%d, v%d, v%d" % (OL, MLB, OB))
    a("v_mul_f32 v%d, v%d, v%d" % (OL + 1, MLB, OB + 1))
    for ws in range(1, 8):
        a("v_fmac_f32 v%d, v%d, v%d" % (MC, MLB + 2 * ws, MLB + 2 * ws + 1))
        a("v_fmac_f32 v%d, v%d, v%d" % (OL, MLB + 2 * ws, OB + 2 * ws))
        a("v_fmac_f32 v%d, v%d, v%d" % (OL + 1, MLB + 2 * ws, OB + 2 * ws + 1))
    a("s_lshl_b32 s8, s6, 5")
    a("s_lshl_b32 s9, s3, 2")
    a("s_add_u32 s8, s8, s9")
    a("s_add_u32 s8, s8, s7")
    a("s_lshl_b32 s8, s8, 5")
    a("s_add_u32 s8, s8, s4")
    a("s_lshl_b32 s9, s8, 9")
    a("s_add_u32 s9, s9, 0x%x" % WS_PO)
    a("buffer_store_dwordx2 v[%d:%d], v%d, s[60:63], s9 offen" % (OL, OL + 1, T1))
    a("s_lshl_b32 s9, s8, 3")
    a("s_add_u32 s9, s9, 0x%x" % WS_ML)
    a("s_mov_b64 exec, 1")
    a("buffer_store_dwordx2 v[%d:%d], off, s[60:63], s9" % (M, MC))
    a("s_mov_b64 exec, -1")
    dstamp(a, 3, 238)

    a.label("L_end")
    a("s_endpgm")
    return name, 256


def k_comb(a):
    name = "comb_kernel"
    WOC = 64
    a.raw(".globl %s" % name)
    a.raw(".p2align 8")
    a.raw(".type %s,@function" % name)
    a.label(name)
    a("s_cmp_ge_u32 s2, 256")
    a("s_cbranch_scc1 L_end_c")
    a("s_load_dwordx16 s[16:31], s[0:1], 0")
    a("s_load_dwordx8 s[32:39], s[0:1], 64")
    a("s_load_dwordx2 s[40:41], s[0:1], 96")
    a("s_and_b32 s3, s2, 7")
    a("s_lshr_b32 s4, s2, 3")
    a("v_lshrrev_b32 v9, 6, v0")
    a("v_readfirstlane_b32 s5, v9")
    a("s_lshr_b32 s84, s4, 4")
    a("s_bfe_u32 s86, s4, 0x20002")
    a("s_and_b32 s87, s4, 3")
    a("s_lshl_b32 s88, s3, 2")
    a("s_add_u32 s88, s88, s86")
    a("s_mov_b32 s15, 0x%x" % f2u(C_SCALE))
    a("v_lshrrev_b32 v1, 4, v0")
    a("v_and_b32 v2, 15, v0")
    a("v_lshlrev_b32 v22, 12, v1")
    a("v_lshl_add_u32 v22, v2, 4, v22")
    a("s_lshl_b32 s9, s88, 17")
    a("s_lshl_b32 s10, s87, 8")
    a("s_add_u32 s14, s9, s10")
    a("v_and_b32 v3, 63, v0")
    a("v_and_b32 v4, 31, v0")
    a("v_lshlrev_b32 v5, 3, v4")
    a("s_lshl_b32 s11, s84, 5")
    a("s_add_u32 s11, s11, s88")
    a("s_lshl_b32 s12, s11, 8")
    a("s_add_u32 s12, s12, 0x%x" % WS_ML)
    a("v_bfe_u32 v6, v0, 5, 1")
    a("v_lshlrev_b32 v7, 9, v4")
    a("v_lshl_add_u32 v7, v6, 5, v7")
    a("s_lshl_b32 s13, s11, 14")
    a("s_lshl_b32 s6, s5, 6")
    a("s_add_u32 s13, s13, s6")
    a("s_add_u32 s13, s13, 0x%x" % WS_PO)
    a("s_waitcnt lgkmcnt(0)")
    srd(a, 60, 40, 41, WS_SIZE)
    a("buffer_load_dwordx2 v[8:9], v5, s[60:63], s12 offen")
    a("buffer_load_dwordx4 v[12:15], v7, s[60:63], s13 offen")
    a("buffer_load_dwordx4 v[16:19], v7, s[60:63], s13 offen offset:16")
    a("s_cmp_eq_u32 s84, 1")
    srd_sel(a, 72, 24, 34, 0x400000)
    for i in range(4):
        a("buffer_load_dwordx4 v[%d:%d], v22, s[72:75], s14 offen offset:%d nt" % (WOC + 4 * i, WOC + 3 + 4 * i, 1024 * i))
    srd(a, 76, 38, 39, 256)
    srd(a, 80, 36, 37, 2048)
    dstamp(a, 4, 23)
    a("v_xor_b32 v10, 16, v3")
    a("v_lshlrev_b32 v10, 2, v10")
    a("v_bfe_u32 v11, v0, 4, 1")
    a("v_cmp_eq_u32 s[98:99], 1, v11")
    a("v_lshlrev_b32 v21, 9, v1")
    a("v_lshl_add_u32 v21, v2, 5, v21")
    a("v_and_b32 v11, 127, v0")
    a("v_lshlrev_b32 v11, 2, v11")
    a("s_waitcnt vmcnt(%d)" % (0 if DIAG else 6))
    a("v_mov_b32 v36, v8")
    for rot in (1, 2, 4, 8):
        a("v_max_f32_dpp v36, v36, v36 row_ror:%d row_mask:0xf bank_mask:0xf" % rot)
    a("ds_bpermute_b32 v37, v10, v36")
    a("s_waitcnt lgkmcnt(0)")
    a("v_max_f32 v36, v36, v37")
    a("v_mul_f32 v36, s15, v36")
    a("v_fma_f32 v38, v8, s15, -v36")
    a("v_exp_f32 v38, v38")
    a("s_waitcnt vmcnt(4)")
    a("v_mul_f32 v9, v38, v9")
    for k in range(8):
        a("v_mul_f32 v%d, v38, v%d" % (12 + k, 12 + k))
    vals = [9] + list(range(12, 20))
    for rot in (1, 2, 4, 8):
        for r in vals:
            a("v_add_f32_dpp v%d, v%d, v%d row_ror:%d row_mask:0xf bank_mask:0xf" % (r, r, r, rot))
    for n, r in enumerate(vals):
        a("ds_bpermute_b32 v%d, v10, v%d" % (40 + n, r))
    a("s_waitcnt lgkmcnt(0)")
    for n, r in enumerate(vals):
        a("v_add_f32 v%d, v%d, v%d" % (r, r, 40 + n))
    a("v_rcp_f32 v9, v9")
    for i in range(4):
        a("v_cndmask_b32 v%d, v%d, v%d, s[98:99]" % (44 + i, 12 + i, 16 + i))
    for i in range(4):
        a("v_mul_f32 v%d, v%d, v9" % (44 + i, 44 + i))
    for i in range(4):
        a("v_cvt_pk_bf16_f32 v%d, v%d, v%d" % (44 + i, 44 + i, 44 + i))
    for i in range(4):
        a("v_lshlrev_b32 v%d, 16, v%d" % (44 + i, 44 + i))
    a("s_waitcnt vmcnt(0)")
    for i in range(4):
        for r in range(4):
            a("v_lshlrev_b32 v37, 16, v%d" % (WOC + 4 * i + r))
            a("v_and_b32 v38, 0xffff0000, v%d" % (WOC + 4 * i + r))
            if i == 0:
                a("v_mul_f32 v%d, v44, v37" % (48 + 2 * r))
                a("v_mul_f32 v%d, v44, v38" % (49 + 2 * r))
            else:
                a("v_fmac_f32 v%d, v%d, v37" % (48 + 2 * r, 44 + i))
                a("v_fmac_f32 v%d, v%d, v38" % (49 + 2 * r, 44 + i))
    a("ds_write_b128 v21, v[48:51]")
    a("ds_write_b128 v21, v[52:55] offset:16")
    a("s_waitcnt lgkmcnt(0)")
    a("s_barrier")
    a("s_lshl_b32 s9, s84, 2")
    a("s_add_u32 s9, s9, s87")
    a("s_cmp_ge_u32 s5, 2")
    a("s_cbranch_scc1 L_after_y")
    for k in range(32):
        a("ds_read_b32 v%d, v11 offset:%d" % (80 + k, 512 * k))
    a("s_waitcnt lgkmcnt(0)")
    for st in (1, 2, 4, 8, 16):
        for k in range(0, 32, 2 * st):
            a("v_add_f32 v%d, v%d, v%d" % (80 + k, 80 + k, 80 + k + st))
    a("s_lshl_b32 s10, s9, 5")
    a("s_add_u32 s10, s10, s88")
    a("s_lshl_b32 s10, s10, 9")
    a("s_add_u32 s10, s10, 0x%x" % WS_Y)
    a("buffer_store_dword v80, v11, s[60:63], s10 offen%s" % (" sc1" if LAST else ""))
    dstamp(a, 5, 23)
    if LAST:
        a("s_waitcnt vmcnt(0)")
    a.label("L_after_y")
    if LAST:
        a("s_barrier")
        a("s_cmp_lg_u32 s5, 0")
        a("s_cbranch_scc1 L_tick")
        a("v_mov_b32 v20, 1")
        a("s_lshl_b32 s10, s9, 4")
        a("s_mov_b64 exec, 1")
        a("buffer_atomic_add v20, off, s[76:79], s10 sc0 sc1")
        a("s_waitcnt vmcnt(0)")
        a("v_mov_b32 v23, 16384")
        a("ds_write_b32 v23, v20")
        a("s_waitcnt lgkmcnt(0)")
        a("s_mov_b64 exec, -1")
        a.label("L_tick")
        a("s_barrier")
        a("v_mov_b32 v23, 16384")
        a("ds_read_b32 v20, v23")
        a("s_waitcnt lgkmcnt(0)")
        a("v_readfirstlane_b32 s10, v20")
        a("s_cmp_lg_u32 s10, 31")
        a("s_cbranch_scc1 L_end_c")
        a("v_lshrrev_b32 v6, 5, v0")
        a("v_lshlrev_b32 v7, 10, v6")
        a("v_lshl_add_u32 v7, v4, 4, v7")
        a("v_lshlrev_b32 v21, 9, v6")
        a("v_lshl_add_u32 v21, v4, 4, v21")
        a("s_lshl_b32 s10, s9, 14")
        a("s_add_u32 s10, s10, 0x%x" % WS_Y)
        a("buffer_load_dwordx4 v[12:15], v7, s[60:63], s10 offen sc1")
        a("buffer_load_dwordx4 v[16:19], v7, s[60:63], s10 offen offset:512 sc1")
        a("s_waitcnt vmcnt(0)")
        for k in range(4):
            a("v_add_f32 v%d, v%d, v%d" % (12 + k, 12 + k, 16 + k))
        a("ds_write_b128 v21, v[12:15]")
        a("s_waitcnt lgkmcnt(0)")
        a("s_barrier")
        a("s_cmp_ge_u32 s5, 2")
        a("s_cbranch_scc1 L_end_c")
        for k in range(16):
            a("ds_read_b32 v%d, v11 offset:%d" % (44 + k, 512 * k))
        a("s_waitcnt lgkmcnt(0)")
        for st in (1, 2, 4, 8):
            for k in range(0, 16, 2 * st):
                a("v_add_f32 v%d, v%d, v%d" % (44 + k, 44 + k, 44 + k + st))
        a("v_cvt_pk_bf16_f32 v44, v44, v44")
        a("v_lshrrev_b32 v11, 1, v11")
        a("s_lshl_b32 s9, s9, 8")
        a("buffer_store_short v44, v11, s[80:83], s9 offen")
        if DIAG:
            a("s_cmp_lg_u32 s9, 0")
            a("s_cbranch_scc1 L_end_c")
            a("s_memrealtime s[92:93]")
            a("v_lshlrev_b32 v60, 3, v0")
            for k in range(6):
                a("s_mov_b32 s94, 0x%x" % (0x200000 + k * 1024))
                a("buffer_load_dwordx2 v[%d:%d], v60, s[60:63], s94 offen sc1" % (62 + 2 * k, 63 + 2 * k))
            a("s_waitcnt vmcnt(0) lgkmcnt(0)")
            words = [1, 2, 3, 5, 6, 7, 9, 10, 11, 13, 14, 15]
            for k in range(6):
                a("v_max_u32 v80, v%d, v%d" % (62 + 2 * k, 63 + 2 * k))
                a("v_min_u32 v81, v%d, v%d" % (62 + 2 * k, 63 + 2 * k))
                a("v_sub_u32 v81, 0, v81")
                a("buffer_atomic_umax v80, off, s[76:79], 0 offset:%d sc1" % (4 * words[2 * k + 1]))
                a("buffer_atomic_umax v81, off, s[76:79], 0 offset:%d sc1" % (4 * words[2 * k]))
                a("s_waitcnt vmcnt(0)")
            a("v_mov_b32 v80, s92")
            a("buffer_atomic_umax v80, off, s[76:79], 0 offset:0 sc1")
    a.label("L_end_c")
    a("s_endpgm")
    return name, 112


def k_final(a):
    name = "final_kernel"
    a.raw(".globl %s" % name)
    a.raw(".p2align 8")
    a.raw(".type %s,@function" % name)
    a.label(name)
    a("s_cmp_ge_u32 s2, 8")
    a("s_cbranch_scc1 L_end_f")
    a("s_load_dwordx2 s[36:37], s[0:1], 80")
    a("s_load_dwordx2 s[40:41], s[0:1], 96")
    a("v_lshrrev_b32 v9, 6, v0")
    a("v_readfirstlane_b32 s5, v9")
    a("v_and_b32 v4, 31, v0")
    a("v_lshrrev_b32 v6, 5, v0")
    a("v_lshlrev_b32 v7, 10, v6")
    a("v_lshl_add_u32 v7, v4, 4, v7")
    a("v_lshlrev_b32 v21, 9, v6")
    a("v_lshl_add_u32 v21, v4, 4, v21")
    a("v_and_b32 v11, 127, v0")
    a("v_lshlrev_b32 v11, 2, v11")
    a("s_lshl_b32 s10, s2, 14")
    a("s_add_u32 s10, s10, 0x%x" % WS_Y)
    a("s_waitcnt lgkmcnt(0)")
    srd(a, 60, 40, 41, WS_SIZE)
    srd(a, 80, 36, 37, 2048)
    a("buffer_load_dwordx4 v[12:15], v7, s[60:63], s10 offen")
    a("buffer_load_dwordx4 v[16:19], v7, s[60:63], s10 offen offset:512")
    a("s_waitcnt vmcnt(0)")
    for k in range(4):
        a("v_add_f32 v%d, v%d, v%d" % (12 + k, 12 + k, 16 + k))
    a("ds_write_b128 v21, v[12:15]")
    a("s_waitcnt lgkmcnt(0)")
    a("s_barrier")
    a("s_cmp_ge_u32 s5, 2")
    a("s_cbranch_scc1 L_end_f")
    for k in range(16):
        a("ds_read_b32 v%d, v11 offset:%d" % (44 + k, 512 * k))
    a("s_waitcnt lgkmcnt(0)")
    for st in (1, 2, 4, 8):
        for k in range(0, 16, 2 * st):
            a("v_add_f32 v%d, v%d, v%d" % (44 + k, 44 + k, 44 + k + st))
    a("v_cvt_pk_bf16_f32 v44, v44, v44")
    a("v_lshrrev_b32 v11, 1, v11")
    a("s_lshl_b32 s9, s2, 8")
    a("buffer_store_short v44, v11, s[80:83], s9 offen")
    a.label("L_end_f")
    a("s_endpgm")
    return name, 64


def main():
    a = Asm()
    a.raw('.amdgcn_target "amdgcn-amd-amdhsa--gfx950"')
    a.raw(".text")
    ks = [k_qproj(a), kernel(a), k_comb(a)] + ([] if LAST else [k_final(a)])
    body = a.finalize()
    launch = ("; @launch kernel=qproj_kernel grid=(256,1,1) block=(512,1,1) lds=16384\n"
              "; @launch kernel=attn_kernel grid=(256,1,1) block=(512,1,1) lds=33792\n"
              "; @launch kernel=comb_kernel grid=(256,1,1) block=(512,1,1) lds=16640\n")
    if not LAST:
        launch += "; @launch kernel=final_kernel grid=(8,1,1) block=(512,1,1) lds=8192\n"
    out = HEADER + launch + body + '.section .rodata,"a"\n'
    for n, v in ks:
        out += ".p2align 6\n" + descriptor(n, v)
    path = sys.argv[1] if len(sys.argv) > 1 else "cdna_kernels/%s.s" % NAME
    open(path, "w").write(out)


if __name__ == "__main__":
    main()
```
